```python
import torch

def _softmax(x, axis=-1):
    return torch.softmax(x, dim=axis)
def _gelu(x):
    return torch.nn.functional.gelu(x, approximate="tanh")
def _silu(x):
    return torch.nn.functional.silu(x)
def _sigmoid(x):
    return torch.sigmoid(x)
def _layernorm(x, axis=-1, eps=1e-5):
    m = x.mean(dim=axis, keepdim=True)
    v = x.var(dim=axis, keepdim=True, unbiased=False)
    return (x - m) / torch.sqrt(v + eps)
def _scatter_add(tgt, idx, src, axis=0):
    return tgt.clone().index_add_(axis, idx, src)
def _segment_sum(src, seg, n):
    out = torch.zeros((n,) + src.shape[1:], dtype=src.dtype)
    return out.index_add_(0, seg, src)
def _pad(x, pw):
    flat = tuple(v for pair in reversed(pw) for v in pair)
    return torch.nn.functional.pad(x, flat)

kernel_name = 'recurrent_scan__sliding_block_cached__moe_arch_mod__prompt'

def setup_inputs():

    _w = (lambda a: (lambda t: t.to(torch.bfloat16) if t.is_floating_point() else t)(torch.as_tensor(a)))
    def _A_setup():
        B, Sq, D = 1, 2048, 448
        Hq, Hkv, Sk, Dh = 16, 8, 2048, 256
        assert Hq % Hkv == 0, (Hq, Hkv)
        return {
            "x": _w((lambda *s: torch.randn(*s, dtype=torch.bfloat16) * 0.05)(B, Sq, D)),
            "k_cache": _w((lambda *s: torch.randn(*s, dtype=torch.bfloat16) * 0.8)(B, Hkv, Sk, Dh)),
            "v_cache": _w((lambda *s: torch.randn(*s, dtype=torch.bfloat16) * 0.2)(B, Hkv, Sk, Dh)),
            "wq": _w((lambda *s: torch.randn(*s, dtype=torch.bfloat16) * 0.8)(D, Hq * Dh) * (D ** -0.5)),
            "wo": _w((lambda *s: torch.randn(*s, dtype=torch.bfloat16) * 0.2)(Hq * Dh, D) * ((Hq * Dh) ** -0.5)),
        }
    _A_in = _A_setup()

    def _B_setup():
        B, S, D, F, C = 1, 2048, 448, 1792, 2
        return {
            "x": _w((lambda *s: torch.randn(*s, dtype=torch.bfloat16) * 0.05)(B, S, D)),
            "w_r": _w((lambda *s: torch.randn(*s, dtype=torch.bfloat16) * 0.2)(D)),
            "w_gate": _w((lambda *s: torch.randn(*s, dtype=torch.bfloat16) * 0.1)(D, F)),
            "w_up": _w((lambda *s: torch.randn(*s, dtype=torch.bfloat16) * 0.1)(D, F)),
            "w_down": _w((lambda *s: torch.randn(*s, dtype=torch.bfloat16) * 0.1)(F, D)),
        }
    _B_in = _B_setup()

    return {
        "A_x": _A_in["x"],
        "A_k_cache": _A_in["k_cache"],
        "A_v_cache": _A_in["v_cache"],
        "A_wq": _A_in["wq"],
        "A_wo": _A_in["wo"],
        "B_x": _B_in["x"],
        "B_w_r": _B_in["w_r"],
        "B_w_gate": _B_in["w_gate"],
        "B_w_up": _B_in["w_up"],
        "B_w_down": _B_in["w_down"],
    }

def reference(A_x, A_k_cache, A_v_cache, A_wq, A_wo, B_x, B_w_r, B_w_gate, B_w_up, B_w_down):
    def _A_ref(x, k_cache, v_cache, wq, wo):
        B, Sq, D = x.shape
        Hq, Dh = 16, 256
        Hkv, Sk = k_cache.shape[1], k_cache.shape[2]
        W = min(4096, max(256, Sk // 4))
        rep = Hq // Hkv
        q = (lambda x, *d: x.permute(*d))((x @ wq).reshape(B, Sq, Hq, Dh), 0, 2, 1, 3)
        k = (lambda x, n, axis: torch.repeat_interleave(x, n, dim=axis))(k_cache[:, :, Sk - W:, :], rep, axis=1)
        v = (lambda x, n, axis: torch.repeat_interleave(x, n, dim=axis))(v_cache[:, :, Sk - W:, :], rep, axis=1)
        scores = torch.einsum("bhqd,bhkd->bhqk", q, k) * (Dh ** -0.5)
        p = _softmax(scores, axis=-1)
        o = torch.einsum("bhqk,bhkd->bhqd", p, v)
        return (lambda x, *d: x.permute(*d))(o, 0, 2, 1, 3).reshape(B, Sq, Hq * Dh) @ wo

    def _B_ref(x, w_r, w_gate, w_up, w_down):
        B, S, D = x.shape
        C = 2
        r = x @ w_r
        idx = torch.argsort(-r, axis=-1)[:, :C]
        idx_e = (lambda x, n, axis: torch.repeat_interleave(x, n, dim=axis))(idx.reshape(B, C, 1), D, axis=2)
        x_sel = (lambda x, i, axis: torch.take_along_dim(x, i, dim=axis))(x, idx_e, axis=1)
        g = _silu(x_sel @ w_gate)
        u = x_sel @ w_up
        y = (g * u) @ w_down
        r_sel = _sigmoid((lambda x, i, axis: torch.take_along_dim(x, i, dim=axis))(r, idx, axis=1))
        y = y * r_sel.reshape(B, C, 1)
        b_off = (torch.arange(B) * S).reshape(B, 1)
        flat_idx = (idx + b_off).reshape(B * C)
        zero = (x * 0.0).reshape(B * S, D)
        upd = _scatter_add(zero, flat_idx, y.reshape(B * C, D), axis=0)
        return x + upd.reshape(B, S, D)

    x = A_x
    xn = _layernorm(x, axis=-1)
    s = _A_ref(xn, A_k_cache, A_v_cache, A_wq, A_wo)
    g = _silu(_B_ref(xn, B_w_r, B_w_gate, B_w_up, B_w_down))
    return x + s * g
```

```python
import re

REG_RE = re.compile(r'\b([vas])(\d+)\b|\b([vas])\[(\d+):(\d+)\]|\b(vcc|exec|m0)\b')
LENIENT = False
TRANS = ('v_exp_f32', 'v_rcp_f32', 'v_sqrt_f32', 'v_rsq_f32', 'v_log_f32')


def regs_of(tok):
    out = []
    for m in REG_RE.finditer(tok):
        if m.group(1):
            out.append(m.group(1) + m.group(2))
        elif m.group(3):
            out += [m.group(3) + str(i) for i in range(int(m.group(4)), int(m.group(5)) + 1)]
        else:
            out.append(m.group(6))
    return out


def split_ops(s):
    ops, depth, cur = [], 0, ''
    for ch in s:
        if ch == '[':
            depth += 1
        if ch == ']':
            depth -= 1
        if ch == ',' and depth == 0:
            ops.append(cur.strip()); cur = ''
        else:
            cur += ch
    if cur.strip():
        ops.append(cur.strip())
    return ops


class I:
    def __init__(self, text, also=(), taken=None, stream=None, waitv=None):
        self.text = text
        self.taken = taken
        self.stream = stream
        self.waitv = waitv
        self.dst, self.src = [], []
        self.dpp = False
        self.need_l = None
        self.need_v = None
        self.nop = 0
        t = text.split(';')[0].strip()
        if t.endswith(':'):
            self.kind = 'label'; self.op = t[:-1]; return
        if t == '' or t.startswith('.'):
            self.kind = 'dir'; self.op = ''; return
        sp = t.split(None, 1)
        op = self.op = sp[0]
        rest = sp[1] if len(sp) > 1 else ''
        ops = split_ops(rest)
        self.ops = ops
        R = [regs_of(o) for o in ops]
        allr = lambda lst: [r for x in lst for r in x]
        if op == 'WAITV':
            self.kind = 'waitv'
        elif op.startswith('v_mfma'):
            self.kind = 'mfma'; self.dst = R[0]; self.src = allr(R[1:])
            self.A, self.B, self.C = R[1], R[2], R[3]
            self.passes = 8 if '32x32' in op else 4
        elif op.startswith('v_permlane'):
            self.kind = 'perm'; self.dst = allr(R); self.src = allr(R)
        elif op.startswith('v_readlane') or op.startswith('v_readfirstlane'):
            self.kind = 'rdlane'; self.dst = R[0]; self.src = allr(R[1:])
        elif op.startswith('v_'):
            self.kind = 'valu'
            if op.startswith(TRANS):
                self.kind = 'trans'
            if op.startswith('v_dot'):
                self.kind = 'dot'
            self.dst = list(R[0]); self.src = allr(R[1:])
            if op.startswith(('v_fmac', 'v_dot2c', 'v_writelane')):
                self.src += R[0]
            if op.startswith(('v_add_co', 'v_sub_co', 'v_addc_co', 'v_div_scale')):
                self.dst += R[1]; self.src = allr(R[2:])
            if op.startswith(('v_div_fmas',)) or (op.startswith('v_cndmask') and len(ops) == 3):
                self.src.append('vcc')
            if 'quad_perm' in t or 'row_' in t:
                self.dpp = True
                self.src += R[0]
        elif op.startswith('ds_read'):
            self.kind = 'dsr'; self.dst = R[0]; self.src = allr(R[1:])
        elif op.startswith('ds_'):
            self.kind = 'dsw'; self.src = allr(R)
        elif op.startswith(('buffer_load', 'global_load')):
            if re.search(r'\blds\b', t):
                self.kind = 'dma'; self.src = allr(R) + ['m0']
            else:
                self.kind = 'vld'; self.dst = R[0]; self.src = allr(R[1:])
        elif op.startswith(('buffer_store', 'global_store')):
            self.kind = 'vst'; self.src = allr(R)
            self.data = R[0] if op.startswith('buffer') else R[1]
        elif op.startswith(('buffer_atomic', 'global_atomic')):
            self.kind = 'vld'; self.src = allr(R)
            self.dst = R[0] if 'sc0' in t else []
        elif op == 's_waitcnt':
            self.kind = 'wait'
            m = re.search(r'vmcnt\((\d+)\)', t); self.wv = int(m.group(1)) if m else None
            m = re.search(r'lgkmcnt\((\d+)\)', t); self.wl = int(m.group(1)) if m else None
        elif op == 's_nop':
            self.kind = 'nop'; self.n = int(ops[0]) + 1
        elif op.startswith(('s_branch', 's_cbranch')):
            self.kind = 'br'; self.target = ops[0]
            if 'vcc' in op:
                self.src = ['vcc']
        elif op == 's_endpgm':
            self.kind = 'end'
        elif op.startswith(('s_load', 's_memtime', 's_memrealtime')):
            self.kind = 'smem'; self.dst = R[0]; self.src = allr(R[1:])
        elif op in ('s_barrier', 's_setprio', 's_sleep'):
            self.kind = 'misc'
        elif op.startswith('s_cmp') or op.startswith('s_bitcmp'):
            self.kind = 'salu'; self.src = allr(R)
        elif op.startswith('s_'):
            self.kind = 'salu'; self.dst = R[0]; self.src = allr(R[1:])
        else:
            raise ValueError('unknown op ' + text)
        self.also = [r for a in also for r in regs_of(a)]


VALUK = ('valu', 'trans', 'dot', 'perm', 'rdlane')


class Prog:
    def __init__(self, name):
        self.name = name
        self.ins = []

    def e(self, text, **kw):
        if isinstance(text, I):
            self.ins.append(text); return text
        i = I(text, **kw)
        self.ins.append(i)
        return i

    def label(self, l):
        self.e(l + ':')

    def trace(self, variant=0, limit=400000):
        lab = {i.op: n for n, i in enumerate(self.ins) if i.kind == 'label'}
        cnt = {}
        pc = 0
        out = []
        while pc < len(self.ins):
            i = self.ins[pc]
            if i.kind not in ('label', 'dir'):
                k = cnt.get(pc, 0); cnt[pc] = k + 1
                out.append((pc, k))
                if len(out) > limit:
                    raise RuntimeError('trace too long')
                if i.kind == 'end':
                    break
                if i.kind == 'br':
                    tk = True if i.op == 's_branch' else (i.taken(k, variant) if i.taken else False)
                    if tk:
                        pc = lab[i.target]; continue
            pc += 1
        return out

    def _waits(self, tr):
        lq, vq = [], []
        seq = {}
        for pc, k in tr:
            i = self.ins[pc]
            touched = set(i.src) | set(i.dst) | set(getattr(i, 'also', []))
            idx = -1
            for n, (regs, smem) in enumerate(lq):
                if regs & touched:
                    idx = n
            if idx >= 0:
                need = len(lq) - 1 - idx
                if any(s for _, s in lq):
                    need = 0
                i.need_l = need if i.need_l is None else min(i.need_l, need)
            idx = -1
            for n, (regs, st, sq) in enumerate(vq):
                if regs & touched:
                    idx = n
                if i.kind == 'waitv' and st == i.waitv[0] and sq < i.waitv[1](k):
                    idx = n
            if i.kind == 'waitv':
                assert LENIENT or seq.get(i.waitv[0], 0) >= i.waitv[1](k), ('waitv for unissued DMA', i.text, k, seq, i.waitv[1](k))
            if idx >= 0:
                need = len(vq) - 1 - idx
                i.need_v = need if i.need_v is None else min(i.need_v, need)
            wl, wv = i.need_l, i.need_v
            if i.kind == 'wait':
                wl, wv = i.wl, i.wv
            if wl is not None:
                if any(s for _, s in lq) and wl > 0:
                    pass
                else:
                    lq = lq[len(lq) - wl:] if wl < len(lq) and wl > 0 else ([] if wl == 0 else lq)
            if wv is not None:
                vq = vq[len(vq) - wv:] if 0 < wv < len(vq) else ([] if wv == 0 else vq)
            if i.kind == 'dsr':
                lq.append((set(i.dst), False))
            elif i.kind == 'dsw':
                lq.append((set(), False))
            elif i.kind == 'smem':
                lq.append((set(i.dst), True))
            elif i.kind in ('vld', 'vst', 'dma'):
                st = i.stream
                sq = seq.get(st, 0)
                seq[st] = sq + 1
                vq.append((set(i.dst), st, sq))

    def _hazards(self, tr):
        t = 0
        last_mfma_t, last_mfma_p = -100, 0
        wr = {}
        mfma_d = {}
        mfma_c = {}
        st_data = {}
        changed = False
        for pc, k in tr:
            i = self.ins[pc]
            if i.kind == 'waitv' and i.need_v is None:
                continue
            if i.kind != 'waitv' and (i.need_l is not None or i.need_v is not None):
                t += 1
            t0 = t + i.nop
            if i.kind == 'mfma':
                t0 = max(t0, last_mfma_t + last_mfma_p)
            req = t0

            def need(pt, ws):
                nonlocal req
                req = max(req, pt + 1 + ws)
            isv = i.kind in VALUK
            for r in i.src:
                if r in wr:
                    pt, pk, pi = wr[r]
                    if pk in VALUK:
                        if i.kind == 'mfma':
                            need(pt, 3 if pk == 'dot' else 2)
                        if pk == 'trans' and isv and i.kind != 'trans':
                            need(pt, 1)
                        if pk == 'trans' and i.kind in ('vst', 'dsw'):
                            need(pt, 1)
                        if pk == 'dot' and not (i.kind == 'dot' and i.op == pi.op and r in i.dst):
                            need(pt, 3)
                        if i.kind == 'perm' or i.dpp:
                            need(pt, 2)
                        if i.kind == 'rdlane' and r[0] == 'v' and r != 'vcc':
                            need(pt, 1)
                        if r[0] == 's' or r == 'vcc':
                            if isv:
                                need(pt, 4 if (i.kind == 'rdlane' or i.op.startswith('v_div_fmas')) else 2)
                            if i.kind in ('vld', 'vst', 'dma'):
                                need(pt, 5)
                            if i.kind in ('br', 'salu'):
                                need(pt, 1)
                    if pk == 'salu' and r == 'm0' and i.kind == 'dma':
                        need(pt, 1)
                if r in mfma_d:
                    pt, pi = mfma_d[r]
                    P = pi.passes
                    if i.kind == 'mfma':
                        if r in i.A or r in i.B:
                            need(pt, P + 4)
                        elif not (i.C == pi.dst and i.passes == P):
                            need(pt, P + 2)
                    else:
                        need(pt, P + 4)
            for r in i.dst:
                if r in mfma_d:
                    pt, pi = mfma_d[r]
                    if i.kind != 'mfma':
                        need(pt, pi.passes + 4)
                    elif not (i.C == pi.dst):
                        need(pt, pi.passes + 2)
                if r in mfma_c and (isv or i.kind in ('dsr', 'vld')):
                    pt, P = mfma_c[r]
                    need(pt, P - 1)
                if r in st_data and i.kind != 'vst':
                    need(st_data[r], 2)
                if r in wr and wr[r][1] == 'dot' and not (i.kind == 'dot' and i.op == wr[r][2].op):
                    need(wr[r][0], 3)
            if req > t0:
                i.nop += req - t0 if i.kind != 'mfma' else req - (t + i.nop)
                changed = True
                t0 = req
            t = t0
            if i.kind == 'mfma':
                last_mfma_t, last_mfma_p = t, i.passes
                for r in i.dst:
                    mfma_d[r] = (t, i); wr.pop(r, None)
                for r in i.C:
                    mfma_c[r] = (t, i.passes)
            else:
                for r in i.dst:
                    wr[r] = (t, i.kind, i); mfma_d.pop(r, None)
            if i.kind == 'vst' and len(i.data) >= 3:
                for r in i.data:
                    st_data[r] = t
            t += i.n if i.kind == 'nop' else 1
        return changed

    def finalize(self, variants=(0,), verbose=True):
        trs = [self.trace(v) for v in variants]
        for _ in range(3):
            for tr in trs:
                self._waits(tr)
        for _ in range(10):
            ch = False
            for tr in trs:
                ch |= self._hazards(tr)
            if not ch:
                break
        seen = set(pc for tr in trs for pc, _ in tr)
        unseen = [i.text for n, i in enumerate(self.ins) if n not in seen and i.kind not in ('label', 'dir')]
        if unseen and verbose:
            print(f'[{self.name}] {len(unseen)} instructions never traced, first: {unseen[:3]}')
        out = []
        for i in self.ins:
            w = []
            if i.kind not in ('label', 'dir', 'wait'):
                if i.need_v is not None:
                    w.append('vmcnt(%d)' % min(i.need_v, 63))
                if i.need_l is not None:
                    w.append('lgkmcnt(%d)' % min(i.need_l, 15))
            if w:
                out.append('  s_waitcnt ' + ' '.join(w))
            n = i.nop
            while n > 0:
                m = min(n, 16)
                out.append('  s_nop %d' % (m - 1))
                n -= m
            if i.kind == 'waitv':
                continue
            out.append(i.text if i.kind in ('label', 'dir') else '  ' + i.text)
        self.trs = trs
        return '\n'.join(out) + '\n'

    def estimate(self):
        tr = self.trs[0]
        t = 0
        last = -100
        region = {}
        lab_of = {}
        cur = 'start'
        for n, i in enumerate(self.ins):
            if i.kind == 'label':
                cur = i.op
            lab_of[n] = cur
        order = []
        for pc, k in tr:
            i = self.ins[pc]
            t0 = t
            if i.need_l is not None or i.need_v is not None:
                t += 4
            t += 4 * i.nop
            if i.kind == 'mfma':
                t = max(t, last)
                last = t + 4 * i.passes
                t += 8
            elif i.kind == 'trans':
                t += 8
            elif i.kind == 'dot':
                t += 14
            elif i.kind == 'dma':
                t += 12
            elif i.kind == 'nop':
                t += 4 * i.n
            elif i.kind == 'waitv':
                pass
            else:
                t += 4
            l = lab_of[pc]
            if l not in region:
                region[l] = [0, 0]; order.append(l)
            region[l][0] += t - t0
            region[l][1] += 4 * i.passes if i.kind == 'mfma' else 0
        for l in order:
            print(f'   {l:24s} est {region[l][0]:7d} cyc   mfma {region[l][1]:7d}')
        print('   total', t)
```

```python
from asmlib import Prog, I
from gen import v, a, s, fbits, MF, red32, norm8, WS_KEYS, WS_STATS, WS_SEL, WS_YP, NMOE, LOG2E


def srd(e, dst, lo, hi, size):
    e(f's_mov_b32 {s(dst)}, {s(lo)}')
    e(f's_and_b32 {s(dst+1)}, {s(hi)}, 0xffff')
    e(f's_mov_b32 {s(dst+2)}, {size}')
    e(f's_mov_b32 {s(dst+3)}, 0x20000')


def red64(e, r, t, op):
    for o in red32([r], t, op):
        e(o)
    e(f'v_mov_b32 {v(t)}, {v(r)}')
    e(f'v_permlane32_swap_b32 {v(r)}, {v(t)}')
    e(f'{op} {v(r)}, {v(r)}, {v(t)}')


def rbf(e, r):
    e(f'v_cvt_pk_bf16_f32 {v(r)}, {v(r)}, {v(r)}')
    e(f'v_lshlrev_b32 {v(r)}, 16, {v(r)}')


def gen_moe():
    p = Prog('moe')
    e = p.e
    p.label('moe_kernel')
    e(f's_cmp_ge_u32 s2, {NMOE}')
    e('s_cbranch_scc1 M_end', taken=lambda k, var: False)
    e('s_load_dwordx2 s[4:5], s[0:1], 0')
    e('s_load_dwordx2 s[6:7], s[0:1], 56')
    e('s_load_dwordx4 s[8:11], s[0:1], 64')
    e('s_load_dwordx2 s[12:13], s[0:1], 96')
    sXs, sG, sU, sD, sWS = 16, 20, 24, 28, 32
    sW, sB, sT = 36, 37, 40
    lane, l16, l4, c4 = 1, 2, 3, 4
    e(f'v_and_b32 {v(lane)}, 63, v0')
    e('v_lshrrev_b32 v5, 6, v0')
    e(f'v_readfirstlane_b32 {s(sW)}, v5')
    e(f'v_lshlrev_b32 {v(l16)}, 4, {v(lane)}')
    e(f'v_lshrrev_b32 {v(l4)}, 2, {v(lane)}')
    e(f'v_and_b32 {v(c4)}, 3, {v(lane)}')
    e(f'v_lshlrev_b32 {v(c4)}, 4, {v(c4)}')
    e('v_mov_b32 v5, 3584')
    e(f'v_mad_u32_u24 v6, {v(l4)}, v5, {v(c4)}')
    e('v_mov_b32 v5, 896')
    e(f'v_mad_u32_u24 v7, {v(l4)}, v5, {v(c4)}')
    e(f's_mul_i32 {s(sB)}, {s(sW)}, 24576')
    srd(e, sWS, 12, 13, 0x10000000)
    KY = 32
    e(f's_mov_b32 {s(sT)}, {WS_KEYS}')
    e(f's_mov_b32 {s(sT+1)}, {WS_KEYS+4096}')
    for i in range(8):
        e(f'buffer_load_dwordx4 {v(KY+4*i,4)}, {v(l16)}, {s(sWS,4)}, {s(sT + i//4)} offen offset:{1024*(i%4)}')
    srd(e, sXs, 4, 5, 2048 * 896)
    srd(e, sG, 6, 7, 448 * 3584)
    srd(e, sU, 8, 9, 448 * 3584)
    srd(e, sD, 10, 11, 1792 * 896)
    e(f's_mul_i32 {s(sT)}, {s(sW)}, {7*16*3584}')
    e(f's_lshl_b32 {s(sT+1)}, s2, 6')
    e(f's_add_u32 {s(sT)}, {s(sT)}, {s(sT+1)}')
    for i in range(7):
        e(f's_add_u32 m0, {s(sB)}, {1024*i}')
        e(I(f'buffer_load_dwordx4 v6, {s(sG,4)}, {s(sT)} offen lds', stream='w'))
        e(f's_add_u32 m0, {s(sB)}, {7168+1024*i}')
        e(I(f'buffer_load_dwordx4 v6, {s(sU,4)}, {s(sT)} offen lds', stream='w'))
        e(f's_add_u32 {s(sT)}, {s(sT)}, {16*3584}')
    e(f's_mul_i32 {s(sT)}, s2, {32*896}')
    for i in range(4):
        e(f's_add_u32 {s(sT+4+i)}, {s(sW)}, {4*i}')
        e(f's_min_u32 {s(sT+4+i)}, {s(sT+4+i)}, 13')
        e(f's_lshl_b32 {s(sT+1)}, {s(sT+4+i)}, 6')
        e(f's_add_u32 {s(sT+1)}, {s(sT+1)}, {s(sT)}')
        e(f's_add_u32 m0, {s(sB)}, {14336+2048*i}')
        e(I(f'buffer_load_dwordx4 v7, {s(sD,4)}, {s(sT+1)} offen lds', stream='w'))
        e(f's_add_u32 {s(sT+1)}, {s(sT+1)}, {16*896}')
        e(f's_add_u32 m0, {s(sB)}, {14336+2048*i+1024}')
        e(I(f'buffer_load_dwordx4 v7, {s(sD,4)}, {s(sT+1)} offen lds', stream='w'))
    tr, hh = 8, 9
    e(f'v_lshrrev_b32 {v(hh)}, 5, {v(lane)}')
    e(f'v_lshlrev_b32 {v(tr)}, 9, {v(hh)}')
    for off, sh, wd in ((2, 6, 2), (4, 5, 1), (0, 4, 1), (1, 3, 1)):
        e(f'v_bfe_u32 v5, {v(lane)}, {off}, {wd}')
        e(f'v_lshl_add_u32 {v(tr)}, v5, {sh}, {v(tr)}')
    e(f'v_add_u32 {v(tr)}, {s(sB)}, {v(tr)}')
    f, sc, t = 10, 11, 12
    e(f'v_max_u32 {v(f)}, {v(KY)}, {v(KY+1)}')
    e(f'v_min_u32 {v(sc)}, {v(KY)}, {v(KY+1)}')
    for i in range(2, 32):
        e(f'v_med3_u32 {v(sc)}, {v(f)}, {v(sc)}, {v(KY+i)}')
        e(f'v_max_u32 {v(f)}, {v(f)}, {v(KY+i)}')
    g1 = 13
    e(f'v_mov_b32 {v(g1)}, {v(f)}')
    red64(e, g1, t, 'v_max_u32')
    e(f'v_cmp_eq_u32 vcc, {v(g1)}, {v(f)}')
    e(f'v_cndmask_b32 {v(f)}, {v(f)}, {v(sc)}, vcc')
    red64(e, f, t, 'v_max_u32')
    e(f'v_cmp_gt_u32 vcc, 32, {v(lane)}')
    e(f'v_cndmask_b32 {v(sc)}, {v(f)}, {v(g1)}, vcc')
    e(f's_or_b32 {s(sT)}, s2, {s(sW)}')
    e(f's_cmp_lg_u32 {s(sT)}, 0')
    e('s_cbranch_scc1 M_nosel', taken=lambda k, var: False)
    e(f'v_lshlrev_b32 {v(t)}, 2, {v(hh)}')
    e(f's_mov_b32 {s(sT)}, {WS_SEL}')
    e(f'buffer_store_dword {v(sc)}, {v(t)}, {s(sWS,4)}, {s(sT)} offen')
    p.label('M_nosel')
    row = 14
    e(f'v_and_b32 {v(row)}, 0xffff, {v(sc)}')
    e(f'v_sub_u32 {v(row)}, 0xffff, {v(row)}')
    e(f'v_and_b32 {v(row)}, 2047, {v(row)}')
    pc = 15
    e(f'v_and_b32 {v(pc)}, 31, {v(lane)}')
    e(f'v_min_u32 {v(pc)}, 13, {v(pc)}')
    e(f'v_lshlrev_b32 {v(pc)}, 4, {v(pc)}')
    e('v_mov_b32 v5, 896')
    e(f'v_mad_u32_u24 {v(t)}, {v(row)}, v5, {v(pc)}')
    e(f's_mul_i32 {s(sT)}, {s(sW)}, 224')
    XR = 16
    e(f'buffer_load_dwordx4 {v(XR,4)}, {v(t)}, {s(sXs,4)}, {s(sT)} offen')
    e(f'v_lshlrev_b32 {v(t)}, 2, {v(row)}')
    e(f's_mov_b32 {s(sT+1)}, {WS_STATS}')
    e(f'buffer_load_dword v20, {v(t)}, {s(sWS,4)}, {s(sT+1)} offen')
    XN = 22528
    e(f'v_lshl_add_u32 {v(pc)}, {v(hh)}, 8, {v(pc)}')
    e(f'v_add_u32 {v(pc)}, {s(sB)}, {v(pc)}')
    ba = 24
    e(f'v_and_b32 v5, 1, {v(lane)}')
    e(f'v_lshlrev_b32 {v(ba)}, 8, v5')
    e(f'v_lshl_add_u32 {v(ba)}, {v(hh)}, 4, {v(ba)}')
    e(f'v_add_u32 {v(ba)}, {s(sB)}, {v(ba)}')
    e('v_lshlrev_b32 v21, 16, v20')
    e('v_and_b32 v20, 0xffff0000, v20')
    e('v_rcp_f32 v20, v20')
    for o in norm8(XR, XR, 4, 21, 20, 22):
        e(o)
    e(f'ds_write_b128 {v(pc)}, {v(XR,4)} offset:{XN}')
    BF = 32
    for i in range(7):
        e(f'ds_read_b128 {v(BF+4*i,4)}, {v(ba)} offset:{XN+32*i}')
    e(I('WAITV', waitv=('w', lambda k: 14)))
    AF = 64
    for i in range(14):
        e(f'ds_read_b64_tr_b16 {v(AF+4*i,2)}, {v(tr)} offset:{1024*i}')
        e(f'ds_read_b64_tr_b16 {v(AF+4*i+2,2)}, {v(tr)} offset:{1024*i+256}')
    G, U = 128, 144
    for i in range(7):
        e(f'{MF} {v(G,16)}, {v(AF+4*i,4)}, {v(BF+4*i,4)}, {v(G,16) if i else 0}')
    for i in range(7):
        e(f'{MF} {v(U,16)}, {v(AF+28+4*i,4)}, {v(BF+4*i,4)}, {v(U,16) if i else 0}')
    EX = 4 * 24576
    xa = 25
    e(f'v_and_b32 v5, 1, {v(lane)}')
    e(f'v_lshlrev_b32 {v(xa)}, 7, v5')
    e(f'v_lshl_add_u32 {v(xa)}, {v(hh)}, 5, {v(xa)}')
    e(f'v_mov_b32 v26, {v(xa)}')
    e(f's_lshl_b32 {s(sT)}, {s(sW)}, 9')
    e(f's_add_u32 {s(sT)}, {s(sT)}, {EX}')
    e(f'v_add_u32 {v(xa)}, {s(sT)}, {v(xa)}')
    e(f's_mov_b32 {s(sT+2)}, 3')
    e(f's_mov_b32 {s(sT+3)}, 3')
    e(I('WAITV', waitv=('w', lambda k: 22)))
    for i in range(8):
        e(f'ds_read_b64_tr_b16 {v(AF+4*i,2)}, {v(tr)} offset:{14336+1024*i}')
        e(f'ds_read_b64_tr_b16 {v(AF+4*i+2,2)}, {v(tr)} offset:{14336+1024*i+256}')
    e(f's_mov_b64 exec, {s(sT+2,2)}')
    for mat, base in enumerate((G, U)):
        for q, off in enumerate((0, 16, 64, 80)):
            e(f'ds_write_b128 {v(xa)}, {v(base+4*q,4)} offset:{256*mat+off}')
    e('s_mov_b64 exec, -1')
    e(f'v_lshlrev_b32 v27, 2, {v(lane)}')
    e(f'v_add_u32 v27, {EX}, v27')
    e('s_waitcnt lgkmcnt(0)')
    e('s_barrier')
    for w_ in range(4):
        e(f'ds_read_b32 {v(32+w_)}, v27 offset:{512*w_}')
        e(f'ds_read_b32 {v(36+w_)}, v27 offset:{512*w_+256}')
    for b in (32, 36):
        e(f'v_add_f32 {v(b)}, {v(b)}, {v(b+1)}')
        e(f'v_add_f32 {v(b+2)}, {v(b+2)}, {v(b+3)}')
        e(f'v_add_f32 {v(b)}, {v(b)}, {v(b+2)}')
    rbf(e, 32); rbf(e, 36)
    e(f'v_mul_f32 v33, {fbits(-LOG2E)}, v32')
    e('v_exp_f32 v33, v33')
    e('v_add_f32 v33, 1.0, v33')
    e('v_rcp_f32 v33, v33')
    e('v_mul_f32 v32, v32, v33')
    rbf(e, 32)
    e('v_mul_f32 v32, v32, v36')
    e('v_cvt_pk_bf16_f32 v32, v32, v32')
    e(f'v_lshlrev_b32 v33, 1, {v(lane)}')
    e(f'v_add_u32 v33, {s(sB)}, v33')
    e(f'ds_write_b16 v33, v32 offset:{XN+512}')
    e('v_lshrrev_b32 v34, 1, v26')
    e(f'v_add_u32 v34, {s(sB)}, v34')
    e(f'ds_read_b128 {v(40,4)}, v34 offset:{XN+512}')
    e(f'ds_read_b128 {v(44,4)}, v34 offset:{XN+512+32}')
    for i in range(4):
        Dd = v(128 + 16 * i, 16)
        e(f'{MF} {Dd}, {v(AF+8*i,4)}, {v(40,4)}, 0')
        e(f'{MF} {Dd}, {v(AF+8*i+4,4)}, {v(44,4)}, {Dd}')
    e(f'v_and_b32 v5, 1, {v(lane)}')
    e('v_mul_u32_u24 v5, 1792, v5')
    e(f'v_lshl_add_u32 v5, {v(hh)}, 5, v5')
    e(f's_mul_i32 {s(sT)}, s2, 3584')
    e(f's_add_u32 {s(sT)}, {s(sT)}, {WS_YP}')
    e(f's_mov_b64 exec, {s(sT+2,2)}')
    for i in range(4):
        e(f's_lshl_b32 {s(sT+1)}, {s(sT+4+i)}, 7')
        e(f's_add_u32 {s(sT+1)}, {s(sT+1)}, {s(sT)}')
        for q, off in enumerate((0, 16, 64, 80)):
            e(f'buffer_store_dwordx4 {v(128+16*i+4*q,4)}, v5, {s(sWS,4)}, {s(sT+1)} offen offset:{off}')
    p.label('M_end')
    e('s_endpgm')
    return p


def gen_fin(OPT):
    p = Prog('fin')
    e = p.e
    LDF = OPT.get('ld', '')
    if LDF:
        LDF = ' ' + LDF.replace('+', ' ')
    p.label('fin_kernel')
    e('s_cmp_ge_u32 s2, 448')
    e('s_cbranch_scc1 F_end', taken=lambda k, var: False)
    e('s_load_dwordx2 s[4:5], s[0:1], 0')
    e('s_load_dwordx2 s[6:7], s[0:1], 80')
    e('s_load_dwordx2 s[8:9], s[0:1], 96')
    sXs, sOut, sWS = 12, 16, 20
    sW, sU, sRg, sCg, sT = 24, 25, 26, 27, 28
    lane, l16 = 1, 2
    e(f'v_and_b32 {v(lane)}, 63, v0')
    e('v_lshrrev_b32 v5, 6, v0')
    e(f'v_readfirstlane_b32 {s(sW)}, v5')
    e(f'v_lshlrev_b32 {v(l16)}, 4, {v(lane)}')
    e(f's_lshl_b32 {s(sU)}, s2, 2')
    e(f's_add_u32 {s(sU)}, {s(sU)}, {s(sW)}')
    e(f's_mul_i32 {s(sRg)}, {s(sU)}, 2341')
    e(f's_lshr_b32 {s(sRg)}, {s(sRg)}, 16')
    e(f's_mul_i32 {s(sT)}, {s(sRg)}, 28')
    e(f's_sub_u32 {s(sCg)}, {s(sU)}, {s(sT)}')
    e(f's_lshl_b32 {s(sT)}, {s(sU)}, 14')
    srd(e, sWS, 8, 9, 0x10000000)
    PT = 32
    for h in range(16):
        if h and h % 4 == 0:
            e(f's_add_u32 {s(sT)}, {s(sT)}, 4096')
        e(f'buffer_load_dwordx4 {v(PT+4*h,4)}, {v(l16)}, {s(sWS,4)}, {s(sT)} offen offset:{1024*(h%4)}{LDF}')
    e(f's_add_u32 s10, s8, {WS_SEL}')
    e('s_addc_u32 s11, s9, 0')
    e('s_load_dwordx2 s[36:37], s[10:11], 0')
    srd(e, sXs, 4, 5, 2048 * 896)
    srd(e, sOut, 6, 7, 2048 * 896)
    m, hh, row, xo = 3, 4, 6, 7
    e(f'v_and_b32 {v(m)}, 31, {v(lane)}')
    e(f'v_lshrrev_b32 {v(hh)}, 5, {v(lane)}')
    e(f's_lshl_b32 {s(sT)}, {s(sRg)}, 5')
    e(f'v_add_u32 {v(row)}, {s(sT)}, {v(m)}')
    e(f'v_mul_u32_u24 {v(xo)}, 896, {v(row)}')
    e(f'v_lshl_add_u32 {v(xo)}, {v(hh)}, 4, {v(xo)}')
    e(f's_lshl_b32 {s(sT+1)}, {s(sCg)}, 5')
    XR = 8
    e(f'buffer_load_dwordx4 {v(XR,4)}, {v(xo)}, {s(sXs,4)}, {s(sT+1)} offen')
    e(f'v_lshlrev_b32 v5, 2, {v(row)}')
    e(f's_mov_b32 {s(sT)}, {WS_STATS}')
    e(f'buffer_load_dword v12, v5, {s(sWS,4)}, {s(sT)} offen')
    AC = 16
    e('v_mov_b32 v13, 0x00003f80')
    e('v_mov_b32 v14, 0x3f800000')
    for r in range(4):
        e(f'v_lshlrev_b32 {v(AC+2*r)}, 16, {v(PT+r)}')
        e(f'v_and_b32 {v(AC+2*r+1)}, 0xffff0000, {v(PT+r)}')
    for h in range(1, 16):
        for r in range(4):
            e(f'v_dot2c_f32_bf16 {v(AC+2*r)}, v13, {v(PT+4*h+r)}')
            e(f'v_dot2c_f32_bf16 {v(AC+2*r+1)}, v14, {v(PT+4*h+r)}')
    e('v_lshlrev_b32 v13, 16, v12')
    e('v_and_b32 v12, 0xffff0000, v12')
    e('v_rcp_f32 v12, v12')
    XNr = 24
    for o in norm8(XR, XNr, 4, 13, 12, 14):
        e(o)
    B = 32
    for r in range(4):
        e(f'v_lshlrev_b32 {v(B+2*r)}, 16, {v(XNr+r)}')
        e(f'v_and_b32 {v(B+2*r+1)}, 0xffff0000, {v(XNr+r)}')
    for n in range(2):
        e(f's_and_b32 {s(sT)}, {s(36+n)}, 0xffff')
        e(f's_sub_u32 {s(sT)}, 0xffff, {s(sT)}')
        e(f's_lshr_b32 {s(sT+2)}, {s(sT)}, 5')
        e(f's_cmp_lg_u32 {s(sT+2)}, {s(sRg)}')
        e(f's_cbranch_scc1 F_skip{n}', taken=lambda k, var: var == 0)
        e(f'v_and_b32 v40, 15, {v(lane)}')
        e('v_lshlrev_b32 v40, 2, v40')
        e(f'v_lshrrev_b32 v41, 4, {v(lane)}')
        e('v_mul_u32_u24 v41, 3584, v41')
        e('v_add_u32 v41, v41, v40')
        e(f's_lshl_b32 {s(sT+2)}, {s(sCg)}, 6')
        e(f's_add_u32 {s(sT+2)}, {s(sT+2)}, {WS_YP + 1792*n}')
        for i in range(NMOE // 4):
            e(f'buffer_load_dword {v(48+i)}, v41, {s(sWS,4)}, {s(sT+2)} offen')
            e(f's_add_u32 {s(sT+2)}, {s(sT+2)}, {4*3584}')
        e(f's_and_b32 {s(sT+3)}, {s(36+n)}, 0xffff0000')
        e(f'v_mov_b32 v42, {s(sT+3)}')
        e('v_ashrrev_i32 v43, 31, v42')
        e('v_not_b32 v43, v43')
        e('v_or_b32 v43, 0x80000000, v43')
        e('v_xor_b32 v42, v42, v43')
        e('v_and_b32 v42, 0xffff0000, v42')
        e(f'v_mul_f32 v42, {fbits(-LOG2E)}, v42')
        e('v_exp_f32 v42, v42')
        e('v_add_f32 v42, 1.0, v42')
        e('v_rcp_f32 v42, v42')
        rbf(e, 42)
        for i in range(1, NMOE // 4):
            e(f'v_add_f32 v48, v48, {v(48+i)}')
        e('v_mov_b32 v43, v48')
        e('v_permlane16_swap_b32 v48, v43')
        e('v_add_f32 v48, v48, v43')
        e('v_mov_b32 v43, v48')
        e('v_permlane32_swap_b32 v48, v43')
        e('v_add_f32 v48, v48, v43')
        rbf(e, 48)
        e('v_mul_f32 v48, v48, v42')
        rbf(e, 48)
        e(f's_lshl_b32 {s(sT+2)}, {s(sW)}, 6')
        e(f'v_add_u32 v40, {s(sT+2)}, v40')
        e('ds_write_b32 v40, v48')
        e(f'v_lshlrev_b32 v41, 5, {v(hh)}')
        e(f'v_add_u32 v41, {s(sT+2)}, v41')
        e('ds_read_b128 v[48:51], v41')
        e('ds_read_b128 v[52:55], v41 offset:16')
        e(f'v_cmp_eq_u32 vcc, {s(sT)}, {v(row)}')
        for r in range(8):
            e(f'v_add_f32 {v(48+r)}, {v(48+r)}, {v(B+r)}')
            rbf(e, 48 + r)
            e(f'v_cndmask_b32 {v(B+r)}, {v(B+r)}, {v(48+r)}, vcc')
        p.label(f'F_skip{n}')
    T = 48
    for r in range(8):
        e(f'v_mul_f32 {v(T+r)}, {fbits(-LOG2E)}, {v(B+r)}')
    for r in range(8):
        e(f'v_exp_f32 {v(T+r)}, {v(T+r)}')
    for r in range(8):
        e(f'v_add_f32 {v(T+r)}, 1.0, {v(T+r)}')
    for r in range(8):
        e(f'v_rcp_f32 {v(T+r)}, {v(T+r)}')
    for r in range(8):
        e(f'v_mul_f32 {v(T+r)}, {v(T+r)}, {v(B+r)}')
    for r in range(4):
        e(f'v_cvt_pk_bf16_f32 {v(B+r)}, {v(T+2*r)}, {v(T+2*r+1)}')
        e(f'v_cvt_pk_bf16_f32 {v(B+4+r)}, {v(AC+2*r)}, {v(AC+2*r+1)}')
    for r in range(4):
        e(f'v_lshlrev_b32 {v(T)}, 16, {v(B+r)}')
        e(f'v_and_b32 {v(T+1)}, 0xffff0000, {v(B+r)}')
        e(f'v_lshlrev_b32 {v(T+2)}, 16, {v(B+4+r)}')
        e(f'v_and_b32 {v(T+3)}, 0xffff0000, {v(B+4+r)}')
        e(f'v_mul_f32 {v(T)}, {v(T)}, {v(T+2)}')
        e(f'v_mul_f32 {v(T+1)}, {v(T+1)}, {v(T+3)}')
        e(f'v_cvt_pk_bf16_f32 {v(T+1)}, {v(T)}, {v(T+1)}')
        e(f'v_lshlrev_b32 {v(T)}, 16, {v(T+1)}')
        e(f'v_and_b32 {v(T+1)}, 0xffff0000, {v(T+1)}')
        e(f'v_lshlrev_b32 {v(T+2)}, 16, {v(XR+r)}')
        e(f'v_and_b32 {v(T+3)}, 0xffff0000, {v(XR+r)}')
        e(f'v_add_f32 {v(T)}, {v(T)}, {v(T+2)}')
        e(f'v_add_f32 {v(T+1)}, {v(T+1)}, {v(T+3)}')
        e(f'v_cvt_pk_bf16_f32 {v(XNr+r)}, {v(T)}, {v(T+1)}')
    e(f'buffer_store_dwordx4 {v(XNr,4)}, {v(xo)}, {s(sOut,4)}, {s(sT+1)} offen')
    p.label('F_end')
    e('s_endpgm')
    return p


def kernels(OPT):
    return [('moe_kernel', gen_moe(), (NMOE, 256, 4 * 24576 + 2048), (192, 192), (0,)),
            ('fin_kernel', gen_fin(OPT), (448, 256, 256), (96, 96), (0, 1))]
```

```python
import sys
from asmlib import Prog, I

NAME = 'recurrent_scan__sliding_block_cached__moe_arch_mod__prompt'
OPT = dict(a.split('=') for a in sys.argv[2:] if '=' in a)

WS_KEYS = 0x2000000
WS_STATS = WS_KEYS + 0x2000
WS_SEL = WS_KEYS + 0x4000
WS_YP = WS_KEYS + 0x10000
NMOE = 56

LOG2E = 1.4426950408889634
import struct


def fbits(x):
    return '0x%08x' % struct.unpack('<I', struct.pack('<f', x))[0]


def v(i, n=1):
    return 'v%d' % i if n == 1 else 'v[%d:%d]' % (i, i + n - 1)


def a(i, n=1):
    return 'a%d' % i if n == 1 else 'a[%d:%d]' % (i, i + n - 1)


def s(i, n=1):
    return 's%d' % i if n == 1 else 's[%d:%d]' % (i, i + n - 1)


MF = 'v_mfma_f32_32x32x16_bf16'
MF16 = 'v_mfma_f32_16x16x32_bf16'


def stats_code(sx, sxx, mb, sd, t):
    return [
        f'v_mul_f32 {v(mb)}, {fbits(1/448)}, {v(sx)}',
        f'v_mul_f32 {v(t)}, {fbits(1/448)}, {v(sxx)}',
        f'v_fma_f32 {v(t)}, -{v(mb)}, {v(mb)}, {v(t)}',
        f'v_max_f32 {v(t)}, 0, {v(t)}',
        f'v_cvt_pk_bf16_f32 {v(t)}, {v(mb)}, {v(t)}',
        f'v_lshlrev_b32 {v(mb)}, 16, {v(t)}',
        f'v_and_b32 {v(t)}, 0xffff0000, {v(t)}',
        f'v_add_f32 {v(t)}, {fbits(1e-5)}, {v(t)}',
        f'v_cvt_pk_bf16_f32 {v(t)}, {v(t)}, {v(t)}',
        f'v_lshlrev_b32 {v(t)}, 16, {v(t)}',
        f'v_sqrt_f32 {v(t)}, {v(t)}',
        f'v_cvt_pk_bf16_f32 {v(t)}, {v(t)}, {v(t)}',
        f'v_lshlrev_b32 {v(sd)}, 16, {v(t)}',
    ]


def red32(regs, tmp, op='v_add_f32'):
    out = []
    for pat in ('quad_perm:[1,0,3,2]', 'quad_perm:[2,3,0,1]', 'row_half_mirror', 'row_mirror'):
        for r in regs:
            out.append(f'{op}_dpp {v(r)}, {v(r)}, {v(r)} {pat} row_mask:0xf bank_mask:0xf')
    for n, r in enumerate(regs):
        out.append(f'v_mov_b32 {v(tmp+n)}, {v(r)}')
    for n, r in enumerate(regs):
        out.append(f'v_permlane16_swap_b32 {v(r)}, {v(tmp+n)}')
    for n, r in enumerate(regs):
        out.append(f'{op} {v(r)}, {v(r)}, {v(tmp+n)}')
    return out


def norm8(src, dst, n, mb, rs, t):
    out = []
    for i in range(n):
        out += [
            f'v_lshlrev_b32 {v(t)}, 16, {v(src+i)}',
            f'v_and_b32 {v(t+1)}, 0xffff0000, {v(src+i)}',
            f'v_sub_f32 {v(t)}, {v(t)}, {v(mb)}',
            f'v_sub_f32 {v(t+1)}, {v(t+1)}, {v(mb)}',
            f'v_cvt_pk_bf16_f32 {v(t+1)}, {v(t)}, {v(t+1)}',
            f'v_lshlrev_b32 {v(t)}, 16, {v(t+1)}',
            f'v_and_b32 {v(t+1)}, 0xffff0000, {v(t+1)}',
            f'v_mul_f32 {v(t)}, {v(t)}, {v(rs)}',
            f'v_mul_f32 {v(t+1)}, {v(t+1)}, {v(rs)}',
            f'v_cvt_pk_bf16_f32 {v(dst+i)}, {v(t)}, {v(t+1)}',
        ]
    return out


QF, X0, X1, Z, P0, P1 = 0, 64, 80, 96, 112, 120
OV = 128
vDE, vDO = 224, 228
vK0, vK1, vV = 232, 233, 234
vT = 235
vL, vLc, vMx, vMx2 = 239, 240, 241, 242
vL16, vTr, vC, vRl = 243, 244, 245, 246
vLane, vTmp = 247, 248
XF, vDX, vXa0, vXa1, vWb, vWc, vSx, vSxx, CS, AP, BP = 128, 144, 148, 149, 150, 154, 158, 159, 160, 164, 176
SJ = 184
FB0, CB0, SV0 = 32, 64, 96
sX, sE, sO, sWS, sWR = 20, 24, 28, 32, 36
sKb, sVb, sWOb, sWQb, sXb = 40, 42, 44, 64, 66
sW, sHead, sQt, sOffE, sOffO, sInc, sRun, sOffX, sXm0, sCnt, sRd = 46, 47, 48, 49, 50, 51, 52, 53, 54, 55, 56
sT = 57
sSt = 62
sThr = 63
XAREA = 131072
D = 6
ORD = [0, 4, 1, 5, 2, 6, 3, 7]
THR = 16.0


def Oreg(t):
    return v(OV + 16 * t, 16) if t < 6 else a(16 * (t - 6), 16)


def fb(j, half=None):
    b = FB0 + 4 * (j % 8)
    if half is None:
        return a(b, 4)
    return a(b + 2 * half, 2)


class Step:
    def __init__(self, mf, reads):
        self.mf = mf
        self.reads = reads
        self.pre = [[] for _ in range(16)]
        self.val = [[] for _ in range(16)]
        self.post = [[] for _ in range(16)]

    def spread(self, ops, g0, g1, counts=None):
        n = g1 - g0 + 1
        for k, o in enumerate(ops):
            self.val[g0 + k * n // len(ops)].append(o)

    def emit(self, p, nxt):
        for j in range(16):
            Dd, B, C = self.mf[j]
            also = [fb(j + 1)] if j % 2 == 0 else []
            p.e(f'{MF} {Dd}, {fb(j)}, {B}, {C}', also=also)
            rd = []
            if j + D < 16:
                rd = self.reads(j + D)
            elif nxt is not None:
                rd = nxt.reads(j + D - 16)
            for o in self.pre[j]:
                p.e(o)
            for o in rd:
                p.e(o)
            for o in self.val[j]:
                p.e(o)
            for o in self.post[j]:
                p.e(o)


def tr_reads(addr, off):
    def f(j):
        ar, o = addr(j), off(j)
        return [f'ds_read_b64_tr_b16 {fb(j,0)}, {v(ar)} offset:{o}',
                f'ds_read_b64_tr_b16 {fb(j,1)}, {v(ar)} offset:{o+256}']
    return f


def dma_ops(which, clamp=None):
    vd, sr, so = (vDE, sE, sOffE) if which == 'E' else (vDO, sO, sOffO)
    g = []
    for j in range(4):
        ops = []
        if j == 0:
            ops.append(f's_and_b32 m0, {s(sRun)}, 0x1ffff')
            ops.append(f's_add_u32 {s(sRun)}, {s(sRun)}, 0x4000')
        ops.append(I(f'buffer_load_dwordx4 {v(vd+j)}, {s(sr,4)}, {s(so)} offen offset:{1024*j} lds', stream='ring'))
        if j == 3:
            ops.append(f's_add_u32 {s(so)}, {s(so)}, {s(sInc)}')
            if clamp is not None:
                ops.append(f's_min_u32 {s(so)}, {s(so)}, {clamp}')
        g.append(ops)
    return g


def xdma_ops(first_also=()):
    g = []
    for j in range(4):
        ops = []
        if j == 0:
            ops.append(f's_mov_b32 m0, {s(sXm0)}')
            ops.append(f's_xor_b32 {s(sXm0)}, {s(sXm0)}, 0x1000')
        ops.append(I(f'buffer_load_dwordx4 {v(vDX+j)}, {s(sX,4)}, {s(sOffX)} offen offset:{1024*j} lds', stream='x',
                     also=first_also if j == 0 else ()))
        if j == 3:
            ops.append(f's_add_u32 {s(sOffX)}, {s(sOffX)}, 128')
            ops.append(f's_min_u32 {s(sOffX)}, {s(sOffX)}, 768')
        g.append(ops)
    return g


def waitring(fn):
    return I('WAITV', waitv=('ring', lambda k: 4 * (fn(k) + 1)))


def softmax_ops(X, P):
    mx = [f'v_max3_f32 {v(vMx)}, {v(X)}, {v(X+1)}, {v(X+2)}']
    for i in range(3, 15, 2):
        mx.append(f'v_max3_f32 {v(vMx)}, {v(vMx)}, {v(X+i)}, {v(X+i+1)}')
    mx.append(f'v_max_f32 {v(vMx)}, {v(vMx)}, {v(X+15)}')
    grp = []
    for q in range(8):
        t0, t1 = vT + 2 * (q % 2), vT + 2 * (q % 2) + 1
        e = [f'v_exp_f32 {v(t0)}, {v(X+2*q)}', f'v_exp_f32 {v(t1)}, {v(X+2*q+1)}']
        if q == 0:
            f = [f'v_add_f32 {v(vLc)}, {v(t0)}, {v(t1)}']
        else:
            f = [f'v_add_f32 {v(vLc)}, {v(vLc)}, {v(t0)}', f'v_add_f32 {v(vLc)}, {v(vLc)}, {v(t1)}']
        f.append(f'v_cvt_pk_bf16_f32 {v(P+q)}, {v(t0)}, {v(t1)}')
        grp.append((e, f))
    slots = []
    for q in range(9):
        e = grp[q][0] if q < 8 else [None, None]
        f = grp[q - 1][1] if q > 0 else []
        h = (len(f) + 1) // 2
        slots.append([x for x in [e[0]] + f[:h] if x])
        slots.append([x for x in [e[1]] + f[h:] if x])
    return mx, slots


def fix_code(p, label, ret, Xc, Xn, P, first=False):
    p.label(label)
    p.e('s_nop 15')
    p.e('s_nop 7')
    t = vTmp
    p.e(f'v_mov_b32 {v(t)}, {v(vMx)}')
    p.e(f'v_permlane32_swap_b32 {v(vMx)}, {v(t)}')
    p.e(f'v_max_f32 {v(vMx)}, {v(vMx)}, {v(t)}')
    if not first:
        p.e(f'v_max_f32 {v(vMx)}, 0, {v(vMx)}')
        p.e(f'v_exp_f32 {v(t)}, -{v(vMx)}')
        for r in range(96):
            p.e(f'v_mul_f32 {v(OV+r)}, {v(OV+r)}, {v(t)}')
        for r in range(32):
            p.e(f'v_accvgpr_read_b32 {v(t+1)}, {a(r)}')
            p.e(f'v_mul_f32 {v(t+1)}, {v(t+1)}, {v(t)}')
            p.e(f'v_accvgpr_write_b32 {a(r)}, {v(t+1)}')
        p.e(f'v_mul_f32 {v(vL)}, {v(vL)}, {v(t)}')
    for r in range(16):
        p.e(f'v_sub_f32 {v(Z+r)}, {v(Z+r)}, {v(vMx)}')
        p.e(f'v_sub_f32 {v(Xc+r)}, {v(Xc+r)}, {v(vMx)}')
        if Xn is not None:
            p.e(f'v_sub_f32 {v(Xn+r)}, {v(Xn+r)}, {v(vMx)}')
    _, slots = softmax_ops(Xc, P)
    for sl in slots:
        for o in sl:
            p.e(o)
    p.e('s_nop 3')
    p.e(f's_branch {ret}')


def gen_main():
    p = Prog('main')
    e = p.e
    K = 'main_kernel'
    p.label(K)
    e(f's_cmp_ge_u32 s2, 256')
    e(f's_cbranch_scc1 L_end', taken=lambda k, var: False)
    e('s_load_dwordx4 s[4:7], s[0:1], 0')
    e('s_load_dwordx4 s[8:11], s[0:1], 16')
    e('s_load_dwordx2 s[12:13], s[0:1], 32')
    e('s_load_dwordx2 s[14:15], s[0:1], 48')
    e('s_load_dwordx2 s[16:17], s[0:1], 96')
    t = vTmp
    e(f'v_and_b32 {v(vLane)}, 63, v0')
    e(f'v_lshrrev_b32 {v(t)}, 6, v0')
    e(f'v_readfirstlane_b32 {s(sW)}, {v(t)}')
    e(f's_and_b32 {s(sT)}, s2, 7')
    e(f's_lshl_b32 {s(sHead)}, {s(sT)}, 1')
    e(f's_bfe_u32 {s(sT+1)}, s2, 0x10003')
    e(f's_add_u32 {s(sHead)}, {s(sHead)}, {s(sT+1)}')
    e(f's_lshr_b32 {s(sQt)}, s2, 4')
    l4, c4, f4, cx = t, t + 1, t + 2, t + 3
    e(f'v_lshrrev_b32 {v(l4)}, 2, {v(vLane)}')
    e(f'v_and_b32 {v(c4)}, 3, {v(vLane)}')
    e(f'v_lshrrev_b32 {v(f4)}, 4, {v(vLane)}')
    e(f'v_xor_b32 {v(cx)}, {v(c4)}, {v(f4)}')
    e(f'v_lshlrev_b32 {v(vL16)}, 4, {v(vLane)}')
    wh, wl = sT + 1, sT + 2
    e(f's_lshr_b32 {s(wh)}, {s(sW)}, 1')
    e(f's_and_b32 {s(wl)}, {s(sW)}, 1')
    u = t + 4
    e(f's_lshl_b32 {s(sT+3)}, {s(wl)}, 1')
    e(f'v_xor_b32 {v(u)}, {s(sT+3)}, {v(cx)}')
    e(f'v_lshlrev_b32 {v(u)}, 4, {v(u)}')
    e(f's_mul_i32 {s(sT+3)}, {s(sW)}, {32*896}')
    e(f'v_mov_b32 {v(u+1)}, 896')
    e(f'v_mad_u32_u24 {v(u)}, {v(l4)}, {v(u+1)}, {v(u)}')
    e(f'v_add_u32 {v(u)}, {s(sT+3)}, {v(u)}')
    e(f's_lshl_b32 {s(sT+3)}, {s(wh)}, 6')
    e(f's_xor_b32 {s(sT+4)}, {s(sT+3)}, 64')
    for j in range(4):
        kg, kc = j >> 1, j & 1
        e(f'v_add_u32 {v(vDX+j)}, {s(sT+3+kc)}, {v(u)}')
        e(f'v_add_u32 {v(vDX+j)}, {kg*16*896 - 1024*j + 3072}, {v(vDX+j)}')
    e(f's_lshl_b32 {s(sT+3)}, {s(sW)}, 17')
    e(f'v_lshlrev_b32 {v(u)}, 13, {v(l4)}')
    e(f'v_lshl_add_u32 {v(u)}, {v(c4)}, 4, {v(u)}')
    e(f'v_add_u32 {v(u)}, {s(sT+3)}, {v(u)}')
    for j in range(4):
        e(f'v_add_u32 {v(vDE+j)}, {64*j - 1024*j + 3072}, {v(u)}')
        e(f'v_add_u32 {v(vDO+j)}, {64*j - 1024*j + 3072}, {v(u)}')
    sj_x, sj_w, sj_a = SJ, SJ + 8, SJ + 16
    li = sj_a + 1
    e(f'v_and_b32 {v(li)}, 31, {v(vLane)}')
    e(f'v_min_u32 {v(li)}, 27, {v(li)}')
    e(f'v_lshlrev_b32 {v(li)}, 5, {v(li)}')
    e(f'v_lshrrev_b32 {v(sj_a+2)}, 5, {v(vLane)}')
    e(f's_lshl_b32 {s(sT+3)}, {s(sHead)}, 3')
    e(f's_lshl_b32 {s(sT+4)}, {s(sW)}, 1')
    e(f's_add_u32 {s(sT+3)}, {s(sT+3)}, {s(sT+4)}')
    e(f'v_add_u32 {v(sj_a+2)}, {s(sT+3)}, {v(sj_a+2)}')
    e(f'v_mad_u32_u24 {v(sj_a)}, {v(sj_a+2)}, {v(u+1)}, {v(li)}')
    e(f's_mul_i32 {s(sT+3)}, {s(sQt)}, {128*896}')
    e(f's_add_u32 {s(sXb)}, s4, {s(sT+3)}')
    e(f's_addc_u32 {s(sXb+1)}, s5, 0')
    e(f's_sub_u32 {s(sX)}, {s(sXb)}, 3072')
    e(f's_subb_u32 {s(sX+1)}, {s(sXb+1)}, 0')
    e(f's_and_b32 {s(sX+1)}, {s(sX+1)}, 0xffff')
    e(f's_mov_b32 {s(sX+2)}, {128*896+3072}')
    e(f's_mov_b32 {s(sX+3)}, 0x20000')
    e(f's_mov_b32 {s(sWR)}, s14')
    e(f's_and_b32 {s(sWR+1)}, s15, 0xffff')
    e(f's_mov_b32 {s(sWR+2)}, 896')
    e(f's_mov_b32 {s(sWR+3)}, 0x20000')
    e(f'buffer_load_dwordx4 {v(sj_x,4)}, {v(sj_a)}, {s(sX,4)}, 0 offen offset:3072')
    e(f'buffer_load_dwordx4 {v(sj_x+4,4)}, {v(sj_a)}, {s(sX,4)}, 0 offen offset:3088')
    e(f'buffer_load_dwordx4 {v(sj_w,4)}, {v(li)}, {s(sWR,4)}, 0 offen')
    e(f'buffer_load_dwordx4 {v(sj_w+4,4)}, {v(li)}, {s(sWR,4)}, 0 offen offset:16')
    e(f's_lshl_b32 {s(sT+3)}, {s(sHead)}, 9')
    e(f's_add_u32 {s(sWQb)}, s10, {s(sT+3)}')
    e(f's_addc_u32 {s(sWQb+1)}, s11, 0')
    e(f's_sub_u32 {s(sE)}, {s(sWQb)}, 3072')
    e(f's_subb_u32 {s(sE+1)}, {s(sWQb+1)}, 0')
    e(f's_and_b32 {s(sE+1)}, {s(sE+1)}, 0xffff')
    e(f's_sub_u32 {s(sE+2)}, {448*8192+3072}, {s(sT+3)}')
    e(f's_mov_b32 {s(sE+3)}, 0x20000')
    e(f's_mov_b32 {s(sO)}, {s(sE)}')
    e(f's_mov_b32 {s(sO+1)}, {s(sE+1)}')
    e(f's_mov_b32 {s(sO+2)}, {s(sE+2)}')
    e(f's_mov_b32 {s(sO+3)}, 0x20000')
    e(f's_mov_b32 {s(sOffE)}, 0')
    e(f's_mov_b32 {s(sOffO)}, 256')
    e(f's_mov_b32 {s(sInc)}, {64*8192}')
    e(f's_lshl_b32 {s(sRun)}, {s(sW)}, 12')
    e(f's_mov_b32 {s(sOffX)}, 0')
    e(f's_lshl_b32 {s(sXm0)}, {s(sW)}, 13')
    e(f's_add_u32 {s(sXm0)}, {s(sXm0)}, {XAREA}')

    def flat(g):
        for ops in g:
            for o in ops:
                e(o)
    flat(xdma_ops()); flat(dma_ops('E')); flat(dma_ops('O'))
    flat(xdma_ops()); flat(dma_ops('E')); flat(dma_ops('O'))
    flat(dma_ops('E')); flat(dma_ops('O'))
    e(f's_lshr_b32 {s(sT+3)}, {s(sHead)}, 1')
    e(f's_lshl_b32 {s(sT+3)}, {s(sT+3)}, 20')
    e(f's_add_u32 {s(sT+3)}, {s(sT+3)}, {1536*512 - 3072}')
    e(f's_add_u32 {s(sKb)}, s6, {s(sT+3)}')
    e(f's_addc_u32 {s(sKb+1)}, s7, 0')
    e(f's_add_u32 {s(sVb)}, s8, {s(sT+3)}')
    e(f's_addc_u32 {s(sVb+1)}, s9, 0')
    e(f's_mul_i32 {s(sT+3)}, {s(sHead)}, {256*896}')
    e(f's_add_u32 {s(sWOb)}, s12, {s(sT+3)}')
    e(f's_addc_u32 {s(sWOb+1)}, s13, 0')
    e(f's_sub_u32 {s(sWOb)}, {s(sWOb)}, 3072')
    e(f's_subb_u32 {s(sWOb+1)}, {s(sWOb+1)}, 0')
    e(f's_mov_b32 {s(sWS)}, s16')
    e(f's_and_b32 {s(sWS+1)}, s17, 0xffff')
    e(f's_mov_b32 {s(sWS+2)}, 0x10000000')
    e(f's_mov_b32 {s(sWS+3)}, 0x20000')
    e(f's_lshl_b32 {s(sT+3)}, {s(sQt)}, 2')
    e(f's_add_u32 {s(sT+3)}, {s(sT+3)}, {s(sW)}')
    e(f's_mul_i32 {s(sSt)}, {s(sT+3)}, {28*16384}')
    e(f's_lshl_b32 {s(sT+3)}, {s(sHead)}, 10')
    e(f's_add_u32 {s(sSt)}, {s(sSt)}, {s(sT+3)}')
    e(f's_mov_b32 {s(sThr)}, {fbits(THR)}')
    e(f's_lshl_b32 {s(sT+3)}, {s(wh)}, 13')
    e(f's_lshl_b32 {s(sT+4)}, {s(wl)}, 8')
    e(f's_add_u32 {s(sT+3)}, {s(sT+3)}, {s(sT+4)}')
    e(f'v_lshlrev_b32 {v(u)}, 9, {v(l4)}')
    e(f'v_add_u32 {v(u)}, {s(sT+3)}, {v(u)}')
    e(f'v_lshl_add_u32 {v(u+2)}, {v(cx)}, 4, {v(u)}')
    e(f'v_lshl_add_u32 {v(u+3)}, {v(c4)}, 4, {v(u)}')
    for j in range(4):
        e(f'v_add_u32 {v(u)}, {64*j - 1024*j + 3072}, {v(u+2)}')
        e(f'v_accvgpr_write_b32 {a(SV0+j)}, {v(u)}')
        e(f'v_add_u32 {v(u)}, {64*j - 1024*j + 3072}, {v(u+3)}')
        e(f'v_accvgpr_write_b32 {a(SV0+4+j)}, {v(u)}')
    e(f's_mul_i32 {s(sT+3)}, {s(sW)}, {64*896}')
    e(f'v_lshlrev_b32 {v(u+2)}, 4, {v(c4)}')
    e(f'v_mad_u32_u24 {v(u+2)}, {v(l4)}, {v(u+1)}, {v(u+2)}')
    e(f'v_add_u32 {v(u+2)}, {s(sT+3)}, {v(u+2)}')
    for j in range(4):
        e(f'v_add_u32 {v(u)}, {(14336 - 1024)*j + 3072}, {v(u+2)}')
        e(f'v_accvgpr_write_b32 {a(SV0+8+j)}, {v(u)}')
    e(f'v_lshrrev_b32 {v(u)}, 5, {v(vLane)}')
    e(f'v_lshlrev_b32 {v(vTr)}, 9, {v(u)}')
    e(f'v_bfe_u32 {v(u+2)}, {v(vLane)}, 2, 2')
    e(f'v_lshl_add_u32 {v(vTr)}, {v(u+2)}, 6, {v(vTr)}')
    e(f'v_bfe_u32 {v(u+2)}, {v(vLane)}, 4, 1')
    e(f'v_lshl_add_u32 {v(vTr)}, {v(u+2)}, 5, {v(vTr)}')
    e(f'v_bfe_u32 {v(u+2)}, {v(vLane)}, 0, 1')
    e(f'v_lshl_add_u32 {v(vTr)}, {v(u+2)}, 4, {v(vTr)}')
    e(f'v_bfe_u32 {v(u+2)}, {v(vLane)}, 1, 1')
    e(f'v_lshl_add_u32 {v(vTr)}, {v(u+2)}, 3, {v(vTr)}')
    for ks in range(4):
        e(f's_xor_b32 {s(sT+3)}, {s(sW)}, {ks}')
        e(f's_lshl_b32 {s(sT+3)}, {s(sT+3)}, 12')
        e(f'v_add_u32 {v(vWb+ks)}, {s(sT+3)}, {v(vTr)}')
        e(f'v_add_u32 {v(vWc+ks)}, {s(sT+3)}, {v(vTr)}')
    e(f's_mov_b32 {s(sRd)}, 0')
    e(f'v_add_u32 {v(vV)}, 0x10000, {v(vTr)}')
    e(f'v_bfe_u32 {v(u+2)}, {v(vLane)}, 2, 2')
    e(f'v_xor_b32 {v(u+2)}, {v(u+2)}, {v(u)}')
    e(f'v_lshlrev_b32 {v(u+2)}, 4, {v(u+2)}')
    e(f'v_and_b32 {v(u+3)}, 15, {v(vLane)}')
    e(f'v_lshl_add_u32 {v(u+2)}, {v(u+3)}, 6, {v(u+2)}')
    e(f'v_bfe_u32 {v(u+3)}, {v(vLane)}, 4, 1')
    e(f'v_lshl_add_u32 {v(u+2)}, {v(u+3)}, 11, {v(u+2)}')
    e(f'v_add_u32 {v(vXa0)}, {s(sXm0)}, {v(u+2)}')
    e(f'v_xor_b32 {v(vXa1)}, 32, {v(vXa0)}')
    e(f'v_bfe_u32 {v(u+2)}, {v(vLane)}, 2, 1')
    e(f'v_bfe_u32 {v(l4)}, {v(vLane)}, 3, 1')
    e(f'v_lshl_add_u32 {v(u+2)}, {v(u+2)}, 1, {v(l4)}')
    e(f'v_lshl_add_u32 {v(l4)}, {v(u+2)}, 2, {v(c4)}')
    e(f'v_xor_b32 {v(u+2)}, {v(u+2)}, {v(u)}')
    e(f'v_lshlrev_b32 {v(u+2)}, 4, {v(u+2)}')
    e(f'v_lshl_add_u32 {v(u+2)}, {v(l4)}, 6, {v(u+2)}')
    e(f'v_lshl_add_u32 {v(u+2)}, {v(u+3)}, 13, {v(u+2)}')
    e(f'v_add_u32 {v(vK0)}, 0x10000, {v(u+2)}')
    e(f'v_xor_b32 {v(vK1)}, 32, {v(vK0)}')
    e(f'v_and_b32 {v(u+2)}, 15, {v(vLane)}')
    e(f'v_sub_u32 {v(u+2)}, {v(u+2)}, {v(u+3)}')
    e(f'v_mov_b32 {v(u)}, 0x3f803f80')
    for tt in range(8):
        e(f'v_cmp_eq_u32 vcc, {2*tt}, {v(u+2)}')
        e(f'v_cndmask_b32 {v(u+3)}, 0, {v(u)}, vcc')
        for r in range(4):
            e(f'v_accvgpr_write_b32 {a(CB0+4*tt+r)}, {v(u+3)}')
    for r in range(0, 128, 2):
        e(f'v_mov_b64 {v(r,2)}, 0')
    for r in range(vSx, SJ, 2):
        e(f'v_mov_b64 {v(r,2)}, 0')
    for r in range(32):
        e(f'v_accvgpr_write_b32 {a(r)}, 0')
    e(f'v_mov_b32 {v(vL)}, 0')
    p.label('L_side')
    s1, s2_, mb, sd, rs, tt = sj_a + 3, sj_a + 4, sj_a + 5, sj_a + 6, sj_a + 7, sj_a + 8
    e(f'v_mov_b64 {v(s1+1,2)}, 0')
    e(f'v_mov_b32 {v(s1)}, 0')
    e(f's_mov_b32 {s(sT+3)}, 0x0fffffff')
    e(f's_mov_b32 {s(sT+4)}, 0x0fffffff')
    e(f's_mov_b64 exec, {s(sT+3,2)}')
    for r in range(8):
        e(f'v_dot2c_f32_bf16 {v(s1)}, {v(u)}, {v(sj_x+r)}')
        e(f'v_dot2c_f32_bf16 {v(s2_)}, {v(sj_x+r)}, {v(sj_x+r)}')
    e('s_mov_b64 exec, -1')
    for o in red32([s1, s2_], tt):
        e(o)
    for o in stats_code(s1, s2_, mb, sd, tt):
        e(o)
    e(f'v_rcp_f32 {v(rs)}, {v(sd)}')
    e(f'v_mov_b32 {v(s1)}, 0')
    for o in norm8(sj_x, sj_x, 8, mb, rs, tt):
        e(o)
    e(f's_mov_b64 exec, {s(sT+3,2)}')
    for r in range(8):
        e(f'v_dot2c_f32_bf16 {v(s1)}, {v(sj_x+r)}, {v(sj_w+r)}')
    e('s_mov_b64 exec, -1')
    for o in red32([s1], tt):
        e(o)
    e(f'v_cvt_pk_bf16_f32 {v(s1)}, 0, {v(s1)}')
    e(f'v_ashrrev_i32 {v(tt)}, 31, {v(s1)}')
    e(f'v_or_b32 {v(tt)}, 0x80000000, {v(tt)}')
    e(f'v_xor_b32 {v(s1)}, {v(s1)}, {v(tt)}')
    e(f'v_and_b32 {v(s1)}, 0xffff0000, {v(s1)}')
    e(f's_lshl_b32 {s(sT+2)}, {s(sQt)}, 7')
    e(f'v_add_u32 {v(sj_a+2)}, {s(sT+2)}, {v(sj_a+2)}')
    e(f'v_sub_u32 {v(tt)}, 0xffff, {v(sj_a+2)}')
    e(f'v_or_b32 {v(s1)}, {v(s1)}, {v(tt)}')
    e(f'v_lshrrev_b32 {v(mb)}, 16, {v(mb)}')
    e(f'v_or_b32 {v(mb)}, {v(mb)}, {v(sd)}')
    e(f'v_lshlrev_b32 {v(sj_a+2)}, 2, {v(sj_a+2)}')
    e(f's_mov_b32 {s(sT+3)}, 1')
    e(f's_mov_b32 {s(sT+4)}, 1')
    e(f's_mov_b32 {s(sT+2)}, {WS_KEYS}')
    e(f's_mov_b32 {s(sT+1)}, {WS_STATS}')
    e(f's_mov_b64 exec, {s(sT+3,2)}')
    e(f'buffer_store_dword {v(s1)}, {v(sj_a+2)}, {s(sWS,4)}, {s(sT+2)} offen')
    e(f'buffer_store_dword {v(mb)}, {v(sj_a+2)}, {s(sWS,4)}, {s(sT+1)} offen')
    e('s_mov_b64 exec, -1')
    e(f'v_mov_b32 {v(vC)}, {v(u)}')
    ones = vC
    e('s_nop 1')
    for r in range(SJ, 224, 2):
        e(f'v_mov_b64 {v(r,2)}, 0')
    stepA = Step([(v(16 * (j % 4), 16), v(XF + 4 * (j // 4), 4), v(16 * (j % 4), 16)) for j in range(16)],
                 tr_reads(lambda j: vWc + j // 4, lambda j: (j % 4) * 1024))
    stepB = Step([(v(64 + 16 * (j % 4), 16), v(XF + 4 * (j // 4), 4), v(64 + 16 * (j % 4), 16)) for j in range(16)],
                 tr_reads(lambda j: vWc + j // 4, lambda j: 16384 + (j % 4) * 1024))

    def xread(ks):
        return f'ds_read_b128 {v(XF+4*ks,4)}, {v(vXa0 + (ks & 1))} offset:{(ks >> 1) * 1024}'
    e(I('WAITV', waitv=('x', lambda k: 4)))
    e(waitring(lambda k: 0))
    e('s_barrier')
    for ks in range(4):
        e(xread(ks))
    for j in range(D):
        for o in stepA.reads(j):
            e(o)
    e(f'v_xor_b32 {v(vXa0)}, 0x1000, {v(vXa0)}')
    e(f'v_xor_b32 {v(vXa1)}, 0x1000, {v(vXa1)}')
    e(f's_mov_b32 {s(sCnt)}, 0')
    p.label('L_g1')
    for j in range(4):
        stepA.post[j].append(f'{MF16} {v(CS,4)}, {fb(j)}, {a(CB0+4*j,4)}, {v(CS,4)}')
        stepB.post[j].append(f'{MF16} {v(CS,4)}, {fb(j)}, {a(CB0+16+4*j,4)}, {v(CS,4)}')
    stepA.pre[4] += [waitring(lambda k: 2 * k + 2), 's_barrier']
    stepA.pre[5] += [f's_cmp_eq_u32 {s(sCnt)}, 4', I('s_cbranch_scc1 L_sw1', taken=lambda k, var: k == 4), 'L_sw1r:']
    xg = xdma_ops(first_also=[v(XF + 12, 4)])
    for j in range(4):
        stepA.pre[6 + j] += xg[j]
    rg = dma_ops('E') + dma_ops('O')
    for j in range(6):
        stepA.pre[10 + j] += rg[j]
    stepB.pre[4] += rg[6]
    stepB.pre[5] += rg[7]
    dots = []
    for ks in range(4):
        for r in range(4):
            dots.append(f'v_dot2c_f32_bf16 {v(vSx)}, {v(ones)}, {v(XF+4*ks+r)}')
            dots.append(f'v_dot2c_f32_bf16 {v(vSxx)}, {v(XF+4*ks+r)}, {v(XF+4*ks+r)}')
    stepA.spread(dots[:16], 0, 15)
    stepB.spread(dots[16:24], 0, 6)
    stepB.spread(dots[24:], 7, 14)
    stepB.pre[0] += [f's_add_u32 {s(sRd)}, {s(sRd)}, 0x8000', f's_and_b32 {s(sRd)}, {s(sRd)}, 0x1ffff']
    for ks, g in enumerate((2, 6, 8, 12)):
        stepB.val[g].append(f'v_add_u32 {v(vWc+ks)}, {s(sRd)}, {v(vWb+ks)}')
    stepB.pre[3].append(I('WAITV', waitv=('x', lambda k: 4 * min(k + 2, 7))))
    for ks in range(4):
        stepB.pre[4 * ks + 3].append(xread(ks))
    stepB.post[15] += [f'v_xor_b32 {v(vXa0)}, 0x1000, {v(vXa0)}', f'v_xor_b32 {v(vXa1)}, 0x1000, {v(vXa1)}']
    stepB.pre[14] += [f's_add_u32 {s(sCnt)}, {s(sCnt)}, 1', f's_cmp_lt_u32 {s(sCnt)}, 7']
    stepA.emit(p, stepB)
    stepB.emit(p, stepA)
    e('s_cbranch_scc1 L_g1', taken=lambda k, var: k < 6)

    p.label('L_t1')

    def kreads(off):
        def f(j):
            st = 2 * ORD[j // 2] + (j % 2)
            return [f'ds_read_b128 {fb(j)}, {v(vK0 + (st & 1))} offset:{off + (st >> 1) * 1024}']
        return f

    def Sstep(X, C0, off):
        return Step([(v(X, 16), v(QF + 4 * j, 4), v(X, 16) if j else C0) for j in range(16)], kreads(off))

    def PVstep(P, off, order=None):
        order = order or [(j // 8, j % 8) for j in range(16)]
        return Step([(Oreg(tl), v(P + 4 * ks, 4), Oreg(tl)) for ks, tl in order],
                    tr_reads(lambda j: vV, lambda j: off + (order[j][0] * 8 + order[j][1]) * 1024))
    S0 = Sstep(X0, '0', 2 * 16384)
    S1 = Sstep(X1, '0', 0)
    ta, tb = vTmp, vTmp + 1
    e(f'v_bfe_u32 {v(ta)}, {v(vLane)}, 1, 1')
    e(f'v_lshlrev_b32 {v(ta)}, 9, {v(ta)}')
    e(f'v_bfe_u32 {v(tb)}, {v(vLane)}, 0, 1')
    e(f'v_lshl_add_u32 {v(ta)}, {v(tb)}, 8, {v(ta)}')
    e(f'v_lshrrev_b32 {v(tb)}, 4, {v(vLane)}')
    e(f'v_lshl_add_u32 {v(ta)}, {v(tb)}, 6, {v(ta)}')
    e(f'v_bfe_u32 {v(tb)}, {v(vLane)}, 2, 2')
    e(f'v_lshl_add_u32 {v(ta)}, {v(tb)}, 2, {v(ta)}')
    e(f's_lshl_b32 {s(sT)}, {s(sW)}, 13')
    e(f's_add_u32 {s(sT)}, {s(sT)}, {XAREA}')
    e(f'v_add_u32 {v(ta)}, {s(sT)}, {v(ta)}')
    e(f'v_add_u32 {v(tb)}, {XAREA}, {v(vL16)}')
    e(I('WAITV', waitv=('x', lambda k: 36)))
    e('s_waitcnt lgkmcnt(0)')
    for r in range(4):
        e(f'ds_write_b32 {v(ta)}, {v(CS+r)} offset:{16*r}')
    t2 = vTmp + 2
    e(f'v_mov_b32 {v(t2)}, {v(vSx)}')
    e(f'v_mov_b32 {v(t2+1)}, {v(vSxx)}')
    e(f'v_permlane32_swap_b32 {v(vSx)}, {v(t2)}')
    e(f'v_permlane32_swap_b32 {v(vSxx)}, {v(t2+1)}')
    e(waitring(lambda k: 16))
    e('s_waitcnt lgkmcnt(0)')
    e('s_barrier')
    R = XF
    for w_ in range(4):
        e(f'ds_read_b128 {v(R+4*w_,4)}, {v(tb)} offset:{8192*w_}')
    for j in range(D):
        for o in S0.reads(j):
            e(o)
    e(f'v_add_f32 {v(vSx)}, {v(vSx)}, {v(t2)}')
    e(f'v_add_f32 {v(vSxx)}, {v(vSxx)}, {v(t2+1)}')
    mb, sd = t2, t2 + 1
    for o in stats_code(vSx, vSxx, mb, sd, t2 + 2):
        e(o)
    e(f'v_rcp_f32 {v(vC)}, {v(sd)}')
    e(f'v_cvt_pk_bf16_f32 {v(mb)}, -{v(mb)}, -{v(mb)}')
    e(f'v_mul_f32 {v(vC)}, {fbits(LOG2E/16)}, {v(vC)}')
    e(f'v_cmp_gt_u32 vcc, 32, {v(vLane)}')
    e(f'v_cndmask_b32 {v(BP)}, 0, {v(mb)}, vcc')
    e(f'v_cndmask_b32 {v(BP+4)}, {v(mb)}, 0, vcc' .replace('v_cndmask_b32', 'v_cndmask_b32_e64'))
    for pp in range(4):
        e(f'v_add_f32 {v(R+pp)}, {v(R+pp)}, {v(R+4+pp)}')
        e(f'v_add_f32 {v(R+8+pp)}, {v(R+8+pp)}, {v(R+12+pp)}')
    for pp in range(4):
        e(f'v_add_f32 {v(R+pp)}, {v(R+pp)}, {v(R+8+pp)}')
    for pp in range(4):
        e(f'v_cvt_pk_bf16_f32 {v(R+4+pp)}, {v(R+pp)}, {v(R+pp)}')
    for pp in range(4):
        e(f'v_lshlrev_b32 {v(R+4+pp)}, 16, {v(R+4+pp)}')
    for pp in range(4):
        e(f'v_sub_f32 {v(R+pp)}, {v(R+pp)}, {v(R+4+pp)}')
    for pp in range(4):
        e(f'v_cvt_pk_bf16_f32 {v(AP+2*pp)}, {v(R+4+pp)}, {v(R+pp)}')
    conv = []
    for j in range(16):
        src = 16 * ORD[j // 2] + 8 * (j % 2)
        for r in range(8):
            conv.append(f'v_mul_f32 {v(src+r)}, {v(src+r)}, {v(vC)}')
        for r in range(4):
            conv.append(f'v_cvt_pk_bf16_f32 {v(QF+4*j+r)}, {v(src+2*r)}, {v(src+2*r+1)}')
    rg = dma_ops('E') + dma_ops('O')
    for c in range(8):
        b = ORD[c]
        e(f'{MF} {v(16*b,16)}, {v(AP+2*(b>>1),4)}, {v(BP+4*(b&1),4)}, {v(16*b,16)}')
        if c < 2:
            for o in rg[2 * c] + rg[2 * c + 1]:
                e(o)
        else:
            for o in conv[8 * (c - 2):8 * (c - 1)]:
                e(o)
    p.label('L_s0')
    S0.spread(conv[48:], 0, 14)
    for j in range(4):
        S0.pre[1 + 3 * j] += rg[4 + j]
    S0.val[9] += [f'v_xor_b32 {v(vK0)}, 0x10000, {v(vK0)}', f'v_xor_b32 {v(vK1)}, 0x10000, {v(vK1)}']
    S0.emit(p, S1)
    p.label('L_s1')
    PVa = PVstep(P0, 3 * 16384)
    Sa = Sstep(X0, v(Z, 16), 2 * 16384)
    PVb = PVstep(P1, 1 * 16384)
    Sb = Sstep(X1, v(Z, 16), 0)
    zero = [f'v_mov_b64 {v(r,2)}, 0' for r in list(range(Z, Z + 16, 2)) + list(range(OV, SJ, 2))]
    S1.val[0] += zero[:5]
    S1.val[1] += zero[5:10]
    mx, slots = softmax_ops(X0, P0)
    allo = []
    zi = 10
    for n, sl in enumerate(slots):
        allo += sl
        if n < len(mx):
            allo.append(mx[n])
        allo += zero[zi:zi + 2]; zi += 2
    assert zi >= len(zero)
    allo += [f'v_cmp_lt_f32 vcc, {s(sThr)}, |{v(vMx)}|'.replace('v_cmp_lt_f32', 'v_cmp_lt_f32_e64')]
    S1.spread(allo, 2, 15)
    S1.pre[3] += [waitring(lambda k: 18), 's_barrier']
    rg = dma_ops('E')
    for j in range(4):
        S1.pre[5 + 2 * j] += rg[j]
    S1.emit(p, PVa)
    e('s_cbranch_vccnz L_fix0', taken=lambda k, var: var == 1)
    p.label('L_fix0r')
    e(f's_mov_b32 {s(sCnt)}, 0')
    p.label('L_fl')

    def sched_pair(PV, S, Xc, Pn, jfun, second):
        PV.val[0].append(f'v_add_f32 {v(vL)}, {v(vL)}, {v(vLc)}')
        mx, slots = softmax_ops(Xc, Pn)
        npv = 9
        g = 2
        for n in range(npv):
            PV.val[g] += slots[n]
            g += 1
            if n % 2 == 1:
                PV.val[g] += mx[n - 1:n + 1]
                g += 1
        assert g <= 16
        if S is None:
            return slots[npv:]
        rem = slots[npv:]
        for n, sl in enumerate(rem):
            S.val[n + (n > 2)] += sl
        S.val[13].append(f'v_cmp_lt_f32 vcc, {s(sThr)}, {v(vMx)}')
        S.pre[3] += [waitring(lambda k: 20 + 2 * jfun(k)), 's_barrier']
        rg = dma_ops('O') + dma_ops('E')
        for j, gg in enumerate((4, 5, 6, 7, 10, 11, 12, 13)):
            S.pre[gg] += rg[j]
        if second:
            S.pre[9] += [f's_cmp_eq_u32 {s(sCnt)}, 5', I('s_cbranch_scc1 L_sw2', taken=lambda k, var: k == 5), 'L_sw2r:']
    sched_pair(PVa, Sa, X1, P1, lambda k: 2 * k, False)
    sched_pair(PVb, Sb, X0, P0, lambda k: 2 * k + 1, True)
    Sa.val[1].append(f'v_xor_b32 {v(vV)}, 0x10000, {v(vV)}')
    PVb.val[1] += [f'v_xor_b32 {v(vK0)}, 0x10000, {v(vK0)}', f'v_xor_b32 {v(vK1)}, 0x10000, {v(vK1)}']
    Sb.pre[14] += [f's_add_u32 {s(sCnt)}, {s(sCnt)}, 1']
    PVa.emit(p, Sa)
    Sa.emit(p, PVb)
    e('s_cbranch_vccnz L_fixa', taken=lambda k, var: var == 1)
    p.label('L_fixar')
    PVb.emit(p, Sb)
    Sb.emit(p, PVa)
    e('s_cbranch_vccnz L_fixb', taken=lambda k, var: var == 1)
    p.label('L_fixbr')
    e(f's_cmp_lt_u32 {s(sCnt)}, 7')
    e('s_cbranch_scc1 L_fl', taken=lambda k, var: k < 6)
    p.label('L_pv14')
    PV14 = PVstep(P0, 3 * 16384)
    TORD = [6, 7, 0, 1, 2, 3, 4, 5]
    PV15 = PVstep(P1, 1 * 16384, order=[(j % 2, TORD[j // 2]) for j in range(16)])
    PV14.val[0].append(f'v_add_f32 {v(vL)}, {v(vL)}, {v(vLc)}')
    mx, slots = softmax_ops(X1, P1)
    allo = []
    for n, sl in enumerate(slots):
        allo += sl
        if n < len(mx):
            allo.append(mx[n])
    allo.append(f'v_cmp_lt_f32 vcc, {s(sThr)}, {v(vMx)}')
    PV14.spread(allo, 2, 15)
    PV14.val[9].append(f'v_xor_b32 {v(vV)}, 0x10000, {v(vV)}')
    PV14.emit(p, PV15)
    e('s_cbranch_vccnz L_fixl', taken=lambda k, var: var == 1)
    p.label('L_fixlr')
    vG = vK0

    def Gstep(X):
        return Step([(v(X, 16), v(QF + 4 * j, 4), v(X, 16) if j else '0') for j in range(16)],
                    tr_reads(lambda j: vG, lambda j: (2 * TORD[j // 2] + j % 2) * 1024))
    G0, Ga, Gb, G13 = Gstep(X0), Gstep(X1), Gstep(X0), Gstep(X1)
    PV15.val[0] += [f'v_add_f32 {v(vL)}, {v(vL)}, {v(vLc)}', f'v_add_u32 {v(vG)}, {6*16384}, {v(vTr)}']
    PV15.val[1] += [f'v_mov_b32 {v(vLc)}, {v(vL)}']
    PV15.val[2] += [f'v_permlane32_swap_b32 {v(vL)}, {v(vLc)}', f'v_add_f32 {v(vL)}, {v(vL)}, {v(vLc)}',
                    f'v_rcp_f32 {v(vRl)}, {v(vL)}']
    PV15.pre[1] += [waitring(lambda k: 47), 's_barrier']
    rg = dma_ops('O') + dma_ops('E')
    for j in range(8):
        PV15.pre[2 + j] += rg[j]
    oconv = []
    for j in range(16):
        tl = TORD[j // 2]
        ops = []
        if tl >= 6:
            for r in range(8):
                ops.append(f'v_accvgpr_read_b32 {v(Z+r)}, {a(16*(tl-6)+8*(j%2)+r)}')
            src = Z
        else:
            src = OV + 16 * tl + 8 * (j % 2)
        for r in range(4):
            ops.append(f'v_cvt_pk_bf16_f32 {v(QF+4*j+r)}, {v(src+2*r)}, {v(src+2*r+1)}')
        oconv.append(ops)
    flat_c = [o for ops in oconv for o in ops]
    PV15.spread(flat_c[:56], 3, 15)
    G0.spread(flat_c[56:], 0, 9)
    PV15.emit(p, G0)

    def adv(G):
        G.val[9] += [f'v_add_u32 {v(vG)}, 0x4000, {v(vG)}', f'v_and_b32 {v(vG)}, 0x1ffff, {v(vG)}']

    def epi_ops(X, Pb):
        ops = []
        for g in range(2):
            for r in range(8):
                ops.append(f'v_mul_f32 {v(X+8*g+r)}, {v(X+8*g+r)}, {v(vRl)}')
            for r in range(4):
                ops.append(f'v_cvt_pk_bf16_f32 {v(Pb+4*g+r)}, {v(X+8*g+2*r)}, {v(X+8*g+2*r+1)}')
            ops.append(f'buffer_store_dwordx4 {v(Pb+4*g,4)}, {v(vL16)}, {s(sWS,4)}, {s(sSt)} offen{STFLAG}')
            ops.append(f's_add_u32 {s(sSt)}, {s(sSt)}, 0x4000')
        return ops
    p.label('L_g0')
    adv(G0)
    G0.emit(p, Ga)
    e(f's_mov_b32 {s(sCnt)}, 0')
    p.label('L_g4')
    adv(Ga); adv(Gb)
    Ga.spread(epi_ops(X0, P0), 2, 15)
    Gb.spread(epi_ops(X1, P1), 2, 15)
    Ga.pre[1] += [waitring(lambda k: 49 + 2 * k), 's_barrier']
    rg = dma_ops('O', clamp=13 * 64) + dma_ops('E', clamp=13 * 64)
    for j in range(4):
        Ga.pre[3 + 3 * j] += rg[j]
        Gb.pre[1 + 3 * j] += rg[4 + j]
    Gb.pre[14] += [f's_add_u32 {s(sCnt)}, {s(sCnt)}, 1']
    Gb.post[15] += [f's_cmp_lt_u32 {s(sCnt)}, 6']
    Ga.emit(p, Gb)
    Gb.emit(p, Ga)
    e('s_cbranch_scc1 L_g4', taken=lambda k, var: k < 5)
    p.label('L_g13')
    G13.spread(epi_ops(X0, P0), 2, 15)
    G13.emit(p, None)
    for o in epi_ops(X1, P1):
        e(o)
    p.label('L_end')
    e('s_endpgm')
    p.label('L_sw1')
    e(f's_mov_b32 {s(sE)}, {s(sKb)}')
    e(f's_and_b32 {s(sE+1)}, {s(sKb+1)}, 0xffff')
    e(f's_mov_b32 {s(sE+2)}, {512*512+3072}')
    e(f's_mov_b32 {s(sO)}, {s(sVb)}')
    e(f's_and_b32 {s(sO+1)}, {s(sVb+1)}, 0xffff')
    e(f's_mov_b32 {s(sO+2)}, {512*512+3072}')
    e(f's_mov_b32 {s(sOffE)}, 0')
    e(f's_mov_b32 {s(sOffO)}, 0')
    e(f's_mov_b32 {s(sInc)}, 16384')
    for j in range(8):
        e(f'v_accvgpr_read_b32 {v(vDE+j)}, {a(SV0+j)}')
    e('s_branch L_sw1r')
    p.label('L_sw2')
    e(f's_mov_b32 {s(sE)}, {s(sWOb)}')
    e(f's_and_b32 {s(sE+1)}, {s(sWOb+1)}, 0xffff')
    e(f's_mov_b32 {s(sE+2)}, {256*896+3072}')
    e(f's_mov_b32 {s(sO)}, {s(sWOb)}')
    e(f's_and_b32 {s(sO+1)}, {s(sWOb+1)}, 0xffff')
    e(f's_mov_b32 {s(sO+2)}, {256*896+3072}')
    e(f's_mov_b32 {s(sOffE)}, 0')
    e(f's_mov_b32 {s(sOffO)}, 64')
    e(f's_mov_b32 {s(sInc)}, 128')
    for j in range(8):
        e(f'v_accvgpr_read_b32 {v(vDE+j)}, {a(SV0+8+j%4)}')
    e('s_branch L_sw2r')
    fix_code(p, 'L_fix0', 'L_fix0r', X0, X1, P0, first=True)
    fix_code(p, 'L_fixa', 'L_fixar', X1, X0, P1)
    fix_code(p, 'L_fixb', 'L_fixbr', X0, X1, P0)
    fix_code(p, 'L_fixl', 'L_fixlr', X1, None, P1)
    return p


STFLAG = OPT.get('st', '')
if STFLAG:
    STFLAG = ' ' + STFLAG.replace('+', ' ')


def kd(name, nv, acc, ns=102):
    return f'''.p2align 6
.amdhsa_kernel {name}
  .amdhsa_next_free_vgpr {nv}
  .amdhsa_next_free_sgpr {ns}
  .amdhsa_accum_offset {acc}
  .amdhsa_group_segment_fixed_size 0
  .amdhsa_kernarg_size 104
  .amdhsa_user_sgpr_count 2
  .amdhsa_user_sgpr_kernarg_segment_ptr 1
  .amdhsa_system_sgpr_workgroup_id_x 1
.end_amdhsa_kernel
'''


def main():
    import gen_small
    ks = [('main_kernel', gen_main(), (256, 256, 163840), (368, 256), (0, 1))]
    ks += gen_small.kernels(OPT)
    only = OPT.get('only')
    if only:
        ks = [k for k in ks if k[0].split('_')[0] in only.split(',')]
    out = []
    for n, _, (g, b, l), _, _ in ks:
        out.append(f'; @launch kernel={n} grid=({g},1,1) block=({b},1,1) lds={l}')
    out.append('.amdgcn_target "amdgcn-amd-amdhsa--gfx950"')
    out.append('.text')
    for n, p, _, _, variants in ks:
        out.append(f'.globl {n}\n.p2align 8\n.type {n},@function')
        out.append(p.finalize(variants))
        if OPT.get('est'):
            p.estimate()
    out.append('.section .rodata,"a"')
    for n, _, _, (nv, acc), _ in ks:
        out.append(kd(n, nv, acc))
    open(sys.argv[1], 'w').write('\n'.join(out))


if __name__ == '__main__':
    main()
```

```python
from asmlib import Prog, I
from gen import v, a, s, fbits, MF, red32, norm8, WS_KEYS, WS_STATS, WS_SEL, WS_YP, NMOE, LOG2E, WS_PART


def srd(e, dst, lo, hi, size):
    e(f's_mov_b32 {s(dst)}, {s(lo)}')
    e(f's_and_b32 {s(dst+1)}, {s(hi)}, 0xffff')
    e(f's_mov_b32 {s(dst+2)}, {size}')
    e(f's_mov_b32 {s(dst+3)}, 0x20000')


def red64(e, r, t, op):
    for o in red32([r], t, op):
        e(o)
    e(f'v_mov_b32 {v(t)}, {v(r)}')
    e(f'v_permlane32_swap_b32 {v(r)}, {v(t)}')
    e(f'{op} {v(r)}, {v(r)}, {v(t)}')


def rbf(e, r):
    e(f'v_cvt_pk_bf16_f32 {v(r)}, {v(r)}, {v(r)}')
    e(f'v_lshlrev_b32 {v(r)}, 16, {v(r)}')


def gen_moe():
    p = Prog('moe')
    e = p.e
    p.label('moe_kernel')
    e(f's_cmp_ge_u32 s2, {NMOE}')
    e('s_cbranch_scc1 M_end', taken=lambda k, var: False)
    e('s_load_dwordx2 s[4:5], s[0:1], 0')
    e('s_load_dwordx2 s[6:7], s[0:1], 56')
    e('s_load_dwordx4 s[8:11], s[0:1], 64')
    e('s_load_dwordx2 s[12:13], s[0:1], 96')
    sXs, sG, sU, sD, sWS = 16, 20, 24, 28, 32
    sW, sB, sT = 36, 37, 40
    lane, l16, l4, c4 = 1, 2, 3, 4
    e(f'v_and_b32 {v(lane)}, 63, v0')
    e('v_lshrrev_b32 v5, 6, v0')
    e(f'v_readfirstlane_b32 {s(sW)}, v5')
    e(f'v_lshlrev_b32 {v(l16)}, 4, {v(lane)}')
    e(f'v_lshrrev_b32 {v(l4)}, 2, {v(lane)}')
    e(f'v_and_b32 {v(c4)}, 3, {v(lane)}')
    e(f'v_lshlrev_b32 {v(c4)}, 4, {v(c4)}')
    e('v_mov_b32 v5, 3584')
    e(f'v_mad_u32_u24 v6, {v(l4)}, v5, {v(c4)}')
    e('v_mov_b32 v5, 896')
    e(f'v_mad_u32_u24 v7, {v(l4)}, v5, {v(c4)}')
    e(f's_mul_i32 {s(sB)}, {s(sW)}, 24576')
    srd(e, sWS, 12, 13, 0x10000000)
    KY = 32
    e(f's_mov_b32 {s(sT)}, {WS_KEYS}')
    e(f's_mov_b32 {s(sT+1)}, {WS_KEYS+4096}')
    for i in range(8):
        e(f'buffer_load_dwordx4 {v(KY+4*i,4)}, {v(l16)}, {s(sWS,4)}, {s(sT + i//4)} offen offset:{1024*(i%4)}')
    srd(e, sXs, 4, 5, 2048 * 896)
    srd(e, sG, 6, 7, 448 * 3584)
    srd(e, sU, 8, 9, 448 * 3584)
    srd(e, sD, 10, 11, 1792 * 896)
    e(f's_mul_i32 {s(sT)}, {s(sW)}, {7*16*3584}')
    e(f's_lshl_b32 {s(sT+1)}, s2, 6')
    e(f's_add_u32 {s(sT)}, {s(sT)}, {s(sT+1)}')
    for i in range(7):
        e(f's_add_u32 m0, {s(sB)}, {1024*i}')
        e(I(f'buffer_load_dwordx4 v6, {s(sG,4)}, {s(sT)} offen lds', stream='w'))
        e(f's_add_u32 m0, {s(sB)}, {7168+1024*i}')
        e(I(f'buffer_load_dwordx4 v6, {s(sU,4)}, {s(sT)} offen lds', stream='w'))
        e(f's_add_u32 {s(sT)}, {s(sT)}, {16*3584}')
    e(f's_mul_i32 {s(sT)}, s2, {32*896}')
    for i in range(4):
        e(f's_add_u32 {s(sT+4+i)}, {s(sW)}, {4*i}')
        e(f's_min_u32 {s(sT+4+i)}, {s(sT+4+i)}, 13')
        e(f's_lshl_b32 {s(sT+1)}, {s(sT+4+i)}, 6')
        e(f's_add_u32 {s(sT+1)}, {s(sT+1)}, {s(sT)}')
        e(f's_add_u32 m0, {s(sB)}, {14336+2048*i}')
        e(I(f'buffer_load_dwordx4 v7, {s(sD,4)}, {s(sT+1)} offen lds', stream='w'))
        e(f's_add_u32 {s(sT+1)}, {s(sT+1)}, {16*896}')
        e(f's_add_u32 m0, {s(sB)}, {14336+2048*i+1024}')
        e(I(f'buffer_load_dwordx4 v7, {s(sD,4)}, {s(sT+1)} offen lds', stream='w'))
    tr, hh = 8, 9
    e(f'v_lshrrev_b32 {v(hh)}, 5, {v(lane)}')
    e(f'v_lshlrev_b32 {v(tr)}, 9, {v(hh)}')
    for off, sh, wd in ((2, 6, 2), (4, 5, 1), (0, 4, 1), (1, 3, 1)):
        e(f'v_bfe_u32 v5, {v(lane)}, {off}, {wd}')
        e(f'v_lshl_add_u32 {v(tr)}, v5, {sh}, {v(tr)}')
    e(f'v_add_u32 {v(tr)}, {s(sB)}, {v(tr)}')
    f, sc, t = 10, 11, 12
    e(f'v_max_u32 {v(f)}, {v(KY)}, {v(KY+1)}')
    e(f'v_min_u32 {v(sc)}, {v(KY)}, {v(KY+1)}')
    for i in range(2, 32):
        e(f'v_med3_u32 {v(sc)}, {v(f)}, {v(sc)}, {v(KY+i)}')
        e(f'v_max_u32 {v(f)}, {v(f)}, {v(KY+i)}')
    g1 = 13
    e(f'v_mov_b32 {v(g1)}, {v(f)}')
    red64(e, g1, t, 'v_max_u32')
    e(f'v_cmp_eq_u32 vcc, {v(g1)}, {v(f)}')
    e(f'v_cndmask_b32 {v(f)}, {v(f)}, {v(sc)}, vcc')
    red64(e, f, t, 'v_max_u32')
    e(f'v_cmp_gt_u32 vcc, 32, {v(lane)}')
    e(f'v_cndmask_b32 {v(sc)}, {v(f)}, {v(g1)}, vcc')
    e(f's_or_b32 {s(sT)}, s2, {s(sW)}')
    e(f's_cmp_lg_u32 {s(sT)}, 0')
    e('s_cbranch_scc1 M_nosel', taken=lambda k, var: False)
    e(f'v_lshlrev_b32 {v(t)}, 2, {v(hh)}')
    e(f's_mov_b32 {s(sT)}, {WS_SEL}')
    e(f'buffer_store_dword {v(sc)}, {v(t)}, {s(sWS,4)}, {s(sT)} offen')
    p.label('M_nosel')
    row = 14
    e(f'v_and_b32 {v(row)}, 0xffff, {v(sc)}')
    e(f'v_sub_u32 {v(row)}, 0xffff, {v(row)}')
    e(f'v_and_b32 {v(row)}, 2047, {v(row)}')
    pc = 15
    e(f'v_and_b32 {v(pc)}, 31, {v(lane)}')
    e(f'v_min_u32 {v(pc)}, 13, {v(pc)}')
    e(f'v_lshlrev_b32 {v(pc)}, 4, {v(pc)}')
    e('v_mov_b32 v5, 896')
    e(f'v_mad_u32_u24 {v(t)}, {v(row)}, v5, {v(pc)}')
    e(f's_mul_i32 {s(sT)}, {s(sW)}, 224')
    XR = 16
    e(f'buffer_load_dwordx4 {v(XR,4)}, {v(t)}, {s(sXs,4)}, {s(sT)} offen')
    e(f'v_lshlrev_b32 {v(t)}, 2, {v(row)}')
    e(f's_mov_b32 {s(sT+1)}, {WS_STATS}')
    e(f'buffer_load_dword v20, {v(t)}, {s(sWS,4)}, {s(sT+1)} offen')
    XN = 22528
    e(f'v_lshl_add_u32 {v(pc)}, {v(hh)}, 8, {v(pc)}')
    e(f'v_add_u32 {v(pc)}, {s(sB)}, {v(pc)}')
    ba = 24
    e(f'v_and_b32 v5, 1, {v(lane)}')
    e(f'v_lshlrev_b32 {v(ba)}, 8, v5')
    e(f'v_lshl_add_u32 {v(ba)}, {v(hh)}, 4, {v(ba)}')
    e(f'v_add_u32 {v(ba)}, {s(sB)}, {v(ba)}')
    e('v_lshlrev_b32 v21, 16, v20')
    e('v_and_b32 v20, 0xffff0000, v20')
    e('v_rcp_f32 v20, v20')
    for o in norm8(XR, XR, 4, 21, 20, 22):
        e(o)
    e(f'ds_write_b128 {v(pc)}, {v(XR,4)} offset:{XN}')
    BF = 32
    for i in range(7):
        e(f'ds_read_b128 {v(BF+4*i,4)}, {v(ba)} offset:{XN+32*i}')
    e(I('WAITV', waitv=('w', lambda k: 14)))
    AF = 64
    for i in range(14):
        e(f'ds_read_b64_tr_b16 {v(AF+4*i,2)}, {v(tr)} offset:{1024*i}')
        e(f'ds_read_b64_tr_b16 {v(AF+4*i+2,2)}, {v(tr)} offset:{1024*i+256}')
    G, U = 128, 144
    for i in range(7):
        e(f'{MF} {v(G,16)}, {v(AF+4*i,4)}, {v(BF+4*i,4)}, {v(G,16) if i else 0}')
    for i in range(7):
        e(f'{MF} {v(U,16)}, {v(AF+28+4*i,4)}, {v(BF+4*i,4)}, {v(U,16) if i else 0}')
    EX = 4 * 24576
    xa = 25
    e(f'v_and_b32 v5, 1, {v(lane)}')
    e(f'v_lshlrev_b32 {v(xa)}, 7, v5')
    e(f'v_lshl_add_u32 {v(xa)}, {v(hh)}, 5, {v(xa)}')
    e(f'v_mov_b32 v26, {v(xa)}')
    e(f's_lshl_b32 {s(sT)}, {s(sW)}, 9')
    e(f's_add_u32 {s(sT)}, {s(sT)}, {EX}')
    e(f'v_add_u32 {v(xa)}, {s(sT)}, {v(xa)}')
    e(f's_mov_b32 {s(sT+2)}, 3')
    e(f's_mov_b32 {s(sT+3)}, 3')
    e(I('WAITV', waitv=('w', lambda k: 22)))
    for i in range(8):
        e(f'ds_read_b64_tr_b16 {v(AF+4*i,2)}, {v(tr)} offset:{14336+1024*i}')
        e(f'ds_read_b64_tr_b16 {v(AF+4*i+2,2)}, {v(tr)} offset:{14336+1024*i+256}')
    e(f's_mov_b64 exec, {s(sT+2,2)}')
    for mat, base in enumerate((G, U)):
        for q, off in enumerate((0, 16, 64, 80)):
            e(f'ds_write_b128 {v(xa)}, {v(base+4*q,4)} offset:{256*mat+off}')
    e('s_mov_b64 exec, -1')
    e(f'v_lshlrev_b32 v27, 2, {v(lane)}')
    e(f'v_add_u32 v27, {EX}, v27')
    e('s_waitcnt lgkmcnt(0)')
    e('s_barrier')
    for w_ in range(4):
        e(f'ds_read_b32 {v(32+w_)}, v27 offset:{512*w_}')
        e(f'ds_read_b32 {v(36+w_)}, v27 offset:{512*w_+256}')
    for b in (32, 36):
        e(f'v_add_f32 {v(b)}, {v(b)}, {v(b+1)}')
        e(f'v_add_f32 {v(b+2)}, {v(b+2)}, {v(b+3)}')
        e(f'v_add_f32 {v(b)}, {v(b)}, {v(b+2)}')
    rbf(e, 32); rbf(e, 36)
    e(f'v_mul_f32 v33, {fbits(-LOG2E)}, v32')
    e('v_exp_f32 v33, v33')
    e('v_add_f32 v33, 1.0, v33')
    e('v_rcp_f32 v33, v33')
    e('v_mul_f32 v32, v32, v33')
    rbf(e, 32)
    e('v_mul_f32 v32, v32, v36')
    e('v_cvt_pk_bf16_f32 v32, v32, v32')
    e(f'v_lshlrev_b32 v33, 1, {v(lane)}')
    e(f'v_add_u32 v33, {s(sB)}, v33')
    e(f'ds_write_b16 v33, v32 offset:{XN+512}')
    e('v_lshrrev_b32 v34, 1, v26')
    e(f'v_add_u32 v34, {s(sB)}, v34')
    e(f'ds_read_b128 {v(40,4)}, v34 offset:{XN+512}')
    e(f'ds_read_b128 {v(44,4)}, v34 offset:{XN+512+32}')
    for i in range(4):
        Dd = v(128 + 16 * i, 16)
        e(f'{MF} {Dd}, {v(AF+8*i,4)}, {v(40,4)}, 0')
        e(f'{MF} {Dd}, {v(AF+8*i+4,4)}, {v(44,4)}, {Dd}')
    e(f'v_and_b32 v5, 1, {v(lane)}')
    e('v_mul_u32_u24 v5, 1792, v5')
    e(f'v_lshl_add_u32 v5, {v(hh)}, 5, v5')
    e(f's_mul_i32 {s(sT)}, s2, 3584')
    e(f's_add_u32 {s(sT)}, {s(sT)}, {WS_YP}')
    e(f's_mov_b64 exec, {s(sT+2,2)}')
    for i in range(4):
        e(f's_lshl_b32 {s(sT+1)}, {s(sT+4+i)}, 7')
        e(f's_add_u32 {s(sT+1)}, {s(sT+1)}, {s(sT)}')
        for q, off in enumerate((0, 16, 64, 80)):
            e(f'buffer_store_dwordx4 {v(128+16*i+4*q,4)}, v5, {s(sWS,4)}, {s(sT+1)} offen offset:{off}')
    p.label('M_end')
    e('s_endpgm')
    return p


def gen_fin(OPT):
    p = Prog('fin')
    e = p.e
    LDF = OPT.get('ld', '')
    if LDF:
        LDF = ' ' + LDF.replace('+', ' ')
    p.label('fin_kernel')
    e('s_cmp_ge_u32 s2, 448')
    e('s_cbranch_scc1 F_end', taken=lambda k, var: False)
    if OPT.get('prof'):
        e('s_memrealtime s[40:41]')
    e('s_load_dwordx2 s[4:5], s[0:1], 0')
    e('s_load_dwordx2 s[6:7], s[0:1], 80')
    e('s_load_dwordx2 s[8:9], s[0:1], 96')
    sXs, sOut, sWS = 12, 16, 20
    sW, sU, sRg, sCg, sT = 24, 25, 26, 27, 28
    lane, l16 = 1, 2
    e(f'v_and_b32 {v(lane)}, 63, v0')
    e('v_lshrrev_b32 v5, 6, v0')
    e(f'v_readfirstlane_b32 {s(sW)}, v5')
    e(f'v_lshlrev_b32 {v(l16)}, 4, {v(lane)}')
    e(f's_lshl_b32 {s(sU)}, s2, 2')
    e(f's_add_u32 {s(sU)}, {s(sU)}, {s(sW)}')
    e(f's_mul_i32 {s(sRg)}, {s(sU)}, 2341')
    e(f's_lshr_b32 {s(sRg)}, {s(sRg)}, 16')
    e(f's_mul_i32 {s(sT)}, {s(sRg)}, 28')
    e(f's_sub_u32 {s(sCg)}, {s(sU)}, {s(sT)}')
    e(f's_lshl_b32 {s(sT)}, {s(sU)}, 14')
    if WS_PART:
        e(f's_add_u32 {s(sT)}, {s(sT)}, {WS_PART}')
    srd(e, sWS, 8, 9, 0x10000000)
    PT = 32
    for h in range(16):
        if h and h % 4 == 0:
            e(f's_add_u32 {s(sT)}, {s(sT)}, 4096')
        e(f'buffer_load_dwordx4 {v(PT+4*h,4)}, {v(l16)}, {s(sWS,4)}, {s(sT)} offen offset:{1024*(h%4)}{LDF}')
    e(f's_add_u32 s10, s8, {WS_SEL}')
    e('s_addc_u32 s11, s9, 0')
    e('s_load_dwordx2 s[36:37], s[10:11], 0')
    srd(e, sXs, 4, 5, 2048 * 896)
    srd(e, sOut, 6, 7, 2048 * 896)
    m, hh, row, xo = 3, 4, 6, 7
    e(f'v_and_b32 {v(m)}, 31, {v(lane)}')
    e(f'v_lshrrev_b32 {v(hh)}, 5, {v(lane)}')
    e(f's_lshl_b32 {s(sT)}, {s(sRg)}, 5')
    e(f'v_add_u32 {v(row)}, {s(sT)}, {v(m)}')
    e(f'v_mul_u32_u24 {v(xo)}, 896, {v(row)}')
    e(f'v_lshl_add_u32 {v(xo)}, {v(hh)}, 4, {v(xo)}')
    e(f's_lshl_b32 {s(sT+1)}, {s(sCg)}, 5')
    XR = 8
    e(f'buffer_load_dwordx4 {v(XR,4)}, {v(xo)}, {s(sXs,4)}, {s(sT+1)} offen')
    e(f'v_lshlrev_b32 v5, 2, {v(row)}')
    e(f's_mov_b32 {s(sT)}, {WS_STATS}')
    e(f'buffer_load_dword v12, v5, {s(sWS,4)}, {s(sT)} offen')
    AC = 16
    if OPT.get('prof'):
        e('s_memrealtime s[42:43]')
        e('s_waitcnt vmcnt(0)')
        e('s_memrealtime s[44:45]')
    e('v_mov_b32 v13, 0x00003f80')
    e('v_mov_b32 v14, 0x3f800000')
    for r in range(4):
        e(f'v_lshlrev_b32 {v(AC+2*r)}, 16, {v(PT+r)}')
        e(f'v_and_b32 {v(AC+2*r+1)}, 0xffff0000, {v(PT+r)}')
    for h in range(1, 16):
        for r in range(4):
            e(f'v_dot2c_f32_bf16 {v(AC+2*r)}, v13, {v(PT+4*h+r)}')
            e(f'v_dot2c_f32_bf16 {v(AC+2*r+1)}, v14, {v(PT+4*h+r)}')
    e('v_lshlrev_b32 v13, 16, v12')
    e('v_and_b32 v12, 0xffff0000, v12')
    e('v_rcp_f32 v12, v12')
    XNr = 24
    for o in norm8(XR, XNr, 4, 13, 12, 14):
        e(o)
    B = 32
    for r in range(4):
        e(f'v_lshlrev_b32 {v(B+2*r)}, 16, {v(XNr+r)}')
        e(f'v_and_b32 {v(B+2*r+1)}, 0xffff0000, {v(XNr+r)}')
    for n in range(2):
        e(f's_and_b32 {s(sT)}, {s(36+n)}, 0xffff')
        e(f's_sub_u32 {s(sT)}, 0xffff, {s(sT)}')
        e(f's_lshr_b32 {s(sT+2)}, {s(sT)}, 5')
        e(f's_cmp_lg_u32 {s(sT+2)}, {s(sRg)}')
        e(f's_cbranch_scc1 F_skip{n}', taken=lambda k, var: var == 0)
        e(f'v_and_b32 v40, 15, {v(lane)}')
        e('v_lshlrev_b32 v40, 2, v40')
        e(f'v_lshrrev_b32 v41, 4, {v(lane)}')
        e('v_mul_u32_u24 v41, 3584, v41')
        e('v_add_u32 v41, v41, v40')
        e(f's_lshl_b32 {s(sT+2)}, {s(sCg)}, 6')
        e(f's_add_u32 {s(sT+2)}, {s(sT+2)}, {WS_YP + 1792*n}')
        for i in range(NMOE // 4):
            e(f'buffer_load_dword {v(48+i)}, v41, {s(sWS,4)}, {s(sT+2)} offen')
            e(f's_add_u32 {s(sT+2)}, {s(sT+2)}, {4*3584}')
        e(f's_and_b32 {s(sT+3)}, {s(36+n)}, 0xffff0000')
        e(f'v_mov_b32 v42, {s(sT+3)}')
        e('v_ashrrev_i32 v43, 31, v42')
        e('v_not_b32 v43, v43')
        e('v_or_b32 v43, 0x80000000, v43')
        e('v_xor_b32 v42, v42, v43')
        e('v_and_b32 v42, 0xffff0000, v42')
        e(f'v_mul_f32 v42, {fbits(-LOG2E)}, v42')
        e('v_exp_f32 v42, v42')
        e('v_add_f32 v42, 1.0, v42')
        e('v_rcp_f32 v42, v42')
        rbf(e, 42)
        for i in range(1, NMOE // 4):
            e(f'v_add_f32 v48, v48, {v(48+i)}')
        e('v_mov_b32 v43, v48')
        e('v_permlane16_swap_b32 v48, v43')
        e('v_add_f32 v48, v48, v43')
        e('v_mov_b32 v43, v48')
        e('v_permlane32_swap_b32 v48, v43')
        e('v_add_f32 v48, v48, v43')
        rbf(e, 48)
        e('v_mul_f32 v48, v48, v42')
        rbf(e, 48)
        e(f's_lshl_b32 {s(sT+2)}, {s(sW)}, 6')
        e(f'v_add_u32 v40, {s(sT+2)}, v40')
        e('ds_write_b32 v40, v48')
        e(f'v_lshlrev_b32 v41, 5, {v(hh)}')
        e(f'v_add_u32 v41, {s(sT+2)}, v41')
        e('ds_read_b128 v[48:51], v41')
        e('ds_read_b128 v[52:55], v41 offset:16')
        e(f'v_cmp_eq_u32 vcc, {s(sT)}, {v(row)}')
        for r in range(8):
            e(f'v_add_f32 {v(48+r)}, {v(48+r)}, {v(B+r)}')
            rbf(e, 48 + r)
            e(f'v_cndmask_b32 {v(B+r)}, {v(B+r)}, {v(48+r)}, vcc')
        p.label(f'F_skip{n}')
    T = 48
    for r in range(8):
        e(f'v_mul_f32 {v(T+r)}, {fbits(-LOG2E)}, {v(B+r)}')
    for r in range(8):
        e(f'v_exp_f32 {v(T+r)}, {v(T+r)}')
    for r in range(8):
        e(f'v_add_f32 {v(T+r)}, 1.0, {v(T+r)}')
    for r in range(8):
        e(f'v_rcp_f32 {v(T+r)}, {v(T+r)}')
    for r in range(8):
        e(f'v_mul_f32 {v(T+r)}, {v(T+r)}, {v(B+r)}')
    for r in range(4):
        e(f'v_cvt_pk_bf16_f32 {v(B+r)}, {v(T+2*r)}, {v(T+2*r+1)}')
        e(f'v_cvt_pk_bf16_f32 {v(B+4+r)}, {v(AC+2*r)}, {v(AC+2*r+1)}')
    for r in range(4):
        e(f'v_lshlrev_b32 {v(T)}, 16, {v(B+r)}')
        e(f'v_and_b32 {v(T+1)}, 0xffff0000, {v(B+r)}')
        e(f'v_lshlrev_b32 {v(T+2)}, 16, {v(B+4+r)}')
        e(f'v_and_b32 {v(T+3)}, 0xffff0000, {v(B+4+r)}')
        e(f'v_mul_f32 {v(T)}, {v(T)}, {v(T+2)}')
        e(f'v_mul_f32 {v(T+1)}, {v(T+1)}, {v(T+3)}')
        e(f'v_cvt_pk_bf16_f32 {v(T+1)}, {v(T)}, {v(T+1)}')
        e(f'v_lshlrev_b32 {v(T)}, 16, {v(T+1)}')
        e(f'v_and_b32 {v(T+1)}, 0xffff0000, {v(T+1)}')
        e(f'v_lshlrev_b32 {v(T+2)}, 16, {v(XR+r)}')
        e(f'v_and_b32 {v(T+3)}, 0xffff0000, {v(XR+r)}')
        e(f'v_add_f32 {v(T)}, {v(T)}, {v(T+2)}')
        e(f'v_add_f32 {v(T+1)}, {v(T+1)}, {v(T+3)}')
        e(f'v_cvt_pk_bf16_f32 {v(XNr+r)}, {v(T)}, {v(T+1)}')
    e(f'buffer_store_dwordx4 {v(XNr,4)}, {v(xo)}, {s(sOut,4)}, {s(sT+1)} offen')
    if OPT.get('prof'):
        e('s_waitcnt vmcnt(0)')
        e('s_memrealtime s[46:47]')
        e(f's_lshl_b32 {s(sT)}, {s(sU)}, 4')
        e(f's_add_u32 {s(sT)}, {s(sT)}, 0x3100000')
        e('v_mov_b32 v16, 0')
        for n in range(4):
            e(f'v_mov_b32 {v(n)}, {s(40 + 2 * n)}')
        e('s_mov_b64 exec, 1')
        e(f'buffer_store_dwordx4 v[0:3], v16, {s(sWS,4)}, {s(sT)} offen')
    p.label('F_end')
    e('s_endpgm')
    return p


def kernels(OPT):
    return [('moe_kernel', gen_moe(), (NMOE, 256, 4 * 24576 + 2048), (192, 192), (0,)),
            ('fin_kernel', gen_fin(OPT), (448, 256, 256), (96, 96), (0, 1))]
```

```python
import sys
from asmlib import Prog, I

import asmlib
NAME = 'recurrent_scan__sliding_block_cached__moe_arch_mod__prompt'
OPT = dict(a.split('=') for a in sys.argv[2:] if '=' in a)

WS_KEYS = 0x2000000
WS_STATS = WS_KEYS + 0x2000
WS_SEL = WS_KEYS + 0x4000
WS_YP = WS_KEYS + 0x10000
NMOE = 56
WS_PART = int(OPT.get('wsoff', '0'), 0)

LOG2E = 1.4426950408889634
import struct


def fbits(x):
    return '0x%08x' % struct.unpack('<I', struct.pack('<f', x))[0]


def v(i, n=1):
    return 'v%d' % i if n == 1 else 'v[%d:%d]' % (i, i + n - 1)


def a(i, n=1):
    return 'a%d' % i if n == 1 else 'a[%d:%d]' % (i, i + n - 1)


def s(i, n=1):
    return 's%d' % i if n == 1 else 's[%d:%d]' % (i, i + n - 1)


MF = 'v_mfma_f32_32x32x16_bf16'
MF16 = 'v_mfma_f32_16x16x32_bf16'


def stats_code(sx, sxx, mb, sd, t):
    return [
        f'v_mul_f32 {v(mb)}, {fbits(1/448)}, {v(sx)}',
        f'v_mul_f32 {v(t)}, {fbits(1/448)}, {v(sxx)}',
        f'v_fma_f32 {v(t)}, -{v(mb)}, {v(mb)}, {v(t)}',
        f'v_max_f32 {v(t)}, 0, {v(t)}',
        f'v_cvt_pk_bf16_f32 {v(t)}, {v(mb)}, {v(t)}',
        f'v_lshlrev_b32 {v(mb)}, 16, {v(t)}',
        f'v_and_b32 {v(t)}, 0xffff0000, {v(t)}',
        f'v_add_f32 {v(t)}, {fbits(1e-5)}, {v(t)}',
        f'v_cvt_pk_bf16_f32 {v(t)}, {v(t)}, {v(t)}',
        f'v_lshlrev_b32 {v(t)}, 16, {v(t)}',
        f'v_sqrt_f32 {v(t)}, {v(t)}',
        f'v_cvt_pk_bf16_f32 {v(t)}, {v(t)}, {v(t)}',
        f'v_lshlrev_b32 {v(sd)}, 16, {v(t)}',
    ]


def red32(regs, tmp, op='v_add_f32'):
    out = []
    for pat in ('quad_perm:[1,0,3,2]', 'quad_perm:[2,3,0,1]', 'row_half_mirror', 'row_mirror'):
        for r in regs:
            out.append(f'{op}_dpp {v(r)}, {v(r)}, {v(r)} {pat} row_mask:0xf bank_mask:0xf')
    for n, r in enumerate(regs):
        out.append(f'v_mov_b32 {v(tmp+n)}, {v(r)}')
    for n, r in enumerate(regs):
        out.append(f'v_permlane16_swap_b32 {v(r)}, {v(tmp+n)}')
    for n, r in enumerate(regs):
        out.append(f'{op} {v(r)}, {v(r)}, {v(tmp+n)}')
    return out


def norm8(src, dst, n, mb, rs, t):
    out = []
    for i in range(n):
        out += [
            f'v_lshlrev_b32 {v(t)}, 16, {v(src+i)}',
            f'v_and_b32 {v(t+1)}, 0xffff0000, {v(src+i)}',
            f'v_sub_f32 {v(t)}, {v(t)}, {v(mb)}',
            f'v_sub_f32 {v(t+1)}, {v(t+1)}, {v(mb)}',
            f'v_cvt_pk_bf16_f32 {v(t+1)}, {v(t)}, {v(t+1)}',
            f'v_lshlrev_b32 {v(t)}, 16, {v(t+1)}',
            f'v_and_b32 {v(t+1)}, 0xffff0000, {v(t+1)}',
            f'v_mul_f32 {v(t)}, {v(t)}, {v(rs)}',
            f'v_mul_f32 {v(t+1)}, {v(t+1)}, {v(rs)}',
            f'v_cvt_pk_bf16_f32 {v(dst+i)}, {v(t)}, {v(t+1)}',
        ]
    return out


QF, X0, X1, Z, P0, P1 = 0, 64, 80, 96, 112, 120
OV = 128
vDE, vDO = 224, 228
vK0, vK1, vV = 232, 233, 234
vT = 235
vL, vLc, vMx, vMx2 = 239, 240, 241, 242
vL16, vTr, vC, vRl = 243, 244, 245, 246
vLane, vTmp = 247, 248
XF, vDX, vXa0, vXa1, vWb, vWc, vSx, vSxx, CS, AP, BP = 128, 144, 148, 149, 150, 154, 158, 159, 160, 164, 176
SJ = 184
FB0, CB0, SV0 = 32, 64, 96
sX, sE, sO, sWS, sWR = 20, 24, 28, 32, 36
sKb, sVb, sWOb, sWQb, sXb = 40, 42, 44, 64, 66
sW, sHead, sQt, sOffE, sOffO, sInc, sRun, sOffX, sXm0, sCnt, sRd = 46, 47, 48, 49, 50, 51, 52, 53, 54, 55, 56
sT = 57
sSt = 62
sThr = 63
XAREA = 131072
D = 6
ORD = [0, 4, 1, 5, 2, 6, 3, 7]
THR = 16.0


def Oreg(t):
    return v(OV + 16 * t, 16) if t < 6 else a(16 * (t - 6), 16)


def fb(j, half=None):
    b = FB0 + 4 * (j % 8)
    if half is None:
        return a(b, 4)
    return a(b + 2 * half, 2)


class Step:
    def __init__(self, mf, reads):
        self.mf = mf
        self.reads = reads
        self.pre = [[] for _ in range(16)]
        self.val = [[] for _ in range(16)]
        self.post = [[] for _ in range(16)]

    def spread(self, ops, g0, g1, counts=None):
        n = g1 - g0 + 1
        for k, o in enumerate(ops):
            self.val[g0 + k * n // len(ops)].append(o)

    def emit(self, p, nxt):
        for j in range(16):
            Dd, B, C = self.mf[j]
            also = [fb(j + 1)] if j % 2 == 0 else []
            p.e(f'{MF} {Dd}, {fb(j)}, {B}, {C}', also=also)
            rd = []
            if j + D < 16:
                rd = self.reads(j + D)
            elif nxt is not None:
                rd = nxt.reads(j + D - 16)
            for o in self.pre[j]:
                p.e(o)
            for o in rd:
                p.e(o)
            for o in self.val[j]:
                p.e(o)
            for o in self.post[j]:
                p.e(o)


def tr_reads(addr, off):
    def f(j):
        ar, o = addr(j), off(j)
        return [f'ds_read_b64_tr_b16 {fb(j,0)}, {v(ar)} offset:{o}',
                f'ds_read_b64_tr_b16 {fb(j,1)}, {v(ar)} offset:{o+256}']
    return f


DMAON = [0]


def dma_ops(which, clamp=None):
    vd, sr, so = (vDE, sE, sOffE) if which == 'E' else (vDO, sO, sOffO)
    g = []
    for j in range(4):
        ops = []
        if j == 0:
            ops.append(f's_and_b32 m0, {s(sRun)}, 0x1ffff')
            ops.append(f's_add_u32 {s(sRun)}, {s(sRun)}, 0x4000')
        if not ('noring' in ABL and DMAON[0]):
            ops.append(I(f'buffer_load_dwordx4 {v(vd+j)}, {s(sr,4)}, {s(so)} offen offset:{1024*j} lds', stream='ring'))
        if j == 3:
            ops.append(f's_add_u32 {s(so)}, {s(so)}, {s(sInc)}')
            if clamp is not None:
                ops.append(f's_min_u32 {s(so)}, {s(so)}, {clamp}')
        g.append(ops)
    return g


def xdma_ops(first_also=()):
    g = []
    for j in range(4):
        ops = []
        if j == 0:
            ops.append(f's_mov_b32 m0, {s(sXm0)}')
            ops.append(f's_xor_b32 {s(sXm0)}, {s(sXm0)}, 0x1000')
        ops.append(I(f'buffer_load_dwordx4 {v(vDX+j)}, {s(sX,4)}, {s(sOffX)} offen offset:{1024*j} lds', stream='x',
                     also=first_also if j == 0 else ()))
        if j == 3:
            ops.append(f's_add_u32 {s(sOffX)}, {s(sOffX)}, 128')
            ops.append(f's_min_u32 {s(sOffX)}, {s(sOffX)}, 768')
        g.append(ops)
    return g


def waitring(fn):
    return I('WAITV', waitv=('ring', lambda k: 4 * (fn(k) + 1)))


def softmax_ops(X, P):
    mx = [f'v_max3_f32 {v(vMx)}, {v(X)}, {v(X+1)}, {v(X+2)}']
    for i in range(3, 15, 2):
        mx.append(f'v_max3_f32 {v(vMx)}, {v(vMx)}, {v(X+i)}, {v(X+i+1)}')
    mx.append(f'v_max_f32 {v(vMx)}, {v(vMx)}, {v(X+15)}')
    grp = []
    for q in range(8):
        t0, t1 = vT + 2 * (q % 2), vT + 2 * (q % 2) + 1
        e = [f'v_exp_f32 {v(t0)}, {v(X+2*q)}', f'v_exp_f32 {v(t1)}, {v(X+2*q+1)}']
        if q == 0:
            f = [f'v_add_f32 {v(vLc)}, {v(t0)}, {v(t1)}']
        else:
            f = [f'v_add_f32 {v(vLc)}, {v(vLc)}, {v(t0)}', f'v_add_f32 {v(vLc)}, {v(vLc)}, {v(t1)}']
        f.append(f'v_cvt_pk_bf16_f32 {v(P+q)}, {v(t0)}, {v(t1)}')
        grp.append((e, f))
    slots = []
    for q in range(9):
        e = grp[q][0] if q < 8 else [None, None]
        f = grp[q - 1][1] if q > 0 else []
        h = (len(f) + 1) // 2
        slots.append([x for x in [e[0]] + f[:h] if x])
        slots.append([x for x in [e[1]] + f[h:] if x])
    return mx, slots


def fix_code(p, label, ret, Xc, Xn, P, first=False):
    p.label(label)
    p.e('s_nop 15')
    p.e('s_nop 7')
    t = vTmp
    p.e(f'v_mov_b32 {v(t)}, {v(vMx)}')
    p.e(f'v_permlane32_swap_b32 {v(vMx)}, {v(t)}')
    p.e(f'v_max_f32 {v(vMx)}, {v(vMx)}, {v(t)}')
    if not first:
        p.e(f'v_max_f32 {v(vMx)}, 0, {v(vMx)}')
        p.e(f'v_exp_f32 {v(t)}, -{v(vMx)}')
        for r in range(96):
            p.e(f'v_mul_f32 {v(OV+r)}, {v(OV+r)}, {v(t)}')
        for r in range(32):
            p.e(f'v_accvgpr_read_b32 {v(t+1)}, {a(r)}')
            p.e(f'v_mul_f32 {v(t+1)}, {v(t+1)}, {v(t)}')
            p.e(f'v_accvgpr_write_b32 {a(r)}, {v(t+1)}')
        p.e(f'v_mul_f32 {v(vL)}, {v(vL)}, {v(t)}')
    for r in range(16):
        p.e(f'v_sub_f32 {v(Z+r)}, {v(Z+r)}, {v(vMx)}')
        p.e(f'v_sub_f32 {v(Xc+r)}, {v(Xc+r)}, {v(vMx)}')
        if Xn is not None:
            p.e(f'v_sub_f32 {v(Xn+r)}, {v(Xn+r)}, {v(vMx)}')
    _, slots = softmax_ops(Xc, P)
    for sl in slots:
        for o in sl:
            p.e(o)
    p.e('s_nop 3')
    p.e(f's_branch {ret}')


PROF = int(OPT.get('prof', 0))
ABL = set(OPT.get('abl', '').split('+'))
WS_PROF = 0x3000000
sPF = 68


def gen_main():
    if OPT.get('abl'):
        asmlib.LENIENT = True
    p = Prog('main')
    e = p.e
    stamps = [0]

    def stamp():
        if PROF:
            e(f's_mem{"real" if PROF == 2 else ""}time {s(sPF + 2 * stamps[0], 2)}')
            stamps[0] += 1
    K = 'main_kernel'
    p.label(K)
    e(f's_cmp_ge_u32 s2, 256')
    e(f's_cbranch_scc1 L_end', taken=lambda k, var: False)
    stamp()
    if PROF:
        e(f's_memrealtime {s(sPF + 28, 2)}')
    e('s_load_dwordx4 s[4:7], s[0:1], 0')
    e('s_load_dwordx4 s[8:11], s[0:1], 16')
    e('s_load_dwordx2 s[12:13], s[0:1], 32')
    e('s_load_dwordx2 s[14:15], s[0:1], 48')
    e('s_load_dwordx2 s[16:17], s[0:1], 96')
    t = vTmp
    e(f'v_and_b32 {v(vLane)}, 63, v0')
    e(f'v_lshrrev_b32 {v(t)}, 6, v0')
    e(f'v_readfirstlane_b32 {s(sW)}, {v(t)}')
    e(f's_and_b32 {s(sT)}, s2, 7')
    e(f's_lshl_b32 {s(sHead)}, {s(sT)}, 1')
    e(f's_bfe_u32 {s(sT+1)}, s2, 0x10003')
    e(f's_add_u32 {s(sHead)}, {s(sHead)}, {s(sT+1)}')
    e(f's_lshr_b32 {s(sQt)}, s2, 4')
    l4, c4, f4, cx = t, t + 1, t + 2, t + 3
    e(f'v_lshrrev_b32 {v(l4)}, 2, {v(vLane)}')
    e(f'v_and_b32 {v(c4)}, 3, {v(vLane)}')
    e(f'v_lshrrev_b32 {v(f4)}, 4, {v(vLane)}')
    e(f'v_xor_b32 {v(cx)}, {v(c4)}, {v(f4)}')
    e(f'v_lshlrev_b32 {v(vL16)}, 4, {v(vLane)}')
    wh, wl = sT + 1, sT + 2
    e(f's_lshr_b32 {s(wh)}, {s(sW)}, 1')
    e(f's_and_b32 {s(wl)}, {s(sW)}, 1')
    u = t + 4
    e(f's_lshl_b32 {s(sT+3)}, {s(wl)}, 1')
    e(f'v_xor_b32 {v(u)}, {s(sT+3)}, {v(cx)}')
    e(f'v_lshlrev_b32 {v(u)}, 4, {v(u)}')
    e(f's_mul_i32 {s(sT+3)}, {s(sW)}, {32*896}')
    e(f'v_mov_b32 {v(u+1)}, 896')
    e(f'v_mad_u32_u24 {v(u)}, {v(l4)}, {v(u+1)}, {v(u)}')
    e(f'v_add_u32 {v(u)}, {s(sT+3)}, {v(u)}')
    e(f's_lshl_b32 {s(sT+3)}, {s(wh)}, 6')
    e(f's_xor_b32 {s(sT+4)}, {s(sT+3)}, 64')
    for j in range(4):
        kg, kc = j >> 1, j & 1
        e(f'v_add_u32 {v(vDX+j)}, {s(sT+3+kc)}, {v(u)}')
        e(f'v_add_u32 {v(vDX+j)}, {kg*16*896 - 1024*j + 3072}, {v(vDX+j)}')
    e(f's_lshl_b32 {s(sT+3)}, {s(sW)}, 17')
    e(f'v_lshlrev_b32 {v(u)}, 13, {v(l4)}')
    e(f'v_lshl_add_u32 {v(u)}, {v(c4)}, 4, {v(u)}')
    e(f'v_add_u32 {v(u)}, {s(sT+3)}, {v(u)}')
    for j in range(4):
        e(f'v_add_u32 {v(vDE+j)}, {64*j - 1024*j + 3072}, {v(u)}')
        e(f'v_add_u32 {v(vDO+j)}, {64*j - 1024*j + 3072}, {v(u)}')
    sj_x, sj_w, sj_a = SJ, SJ + 8, SJ + 16
    li = sj_a + 1
    e(f'v_and_b32 {v(li)}, 31, {v(vLane)}')
    e(f'v_min_u32 {v(li)}, 27, {v(li)}')
    e(f'v_lshlrev_b32 {v(li)}, 5, {v(li)}')
    e(f'v_lshrrev_b32 {v(sj_a+2)}, 5, {v(vLane)}')
    e(f's_lshl_b32 {s(sT+3)}, {s(sHead)}, 3')
    e(f's_lshl_b32 {s(sT+4)}, {s(sW)}, 1')
    e(f's_add_u32 {s(sT+3)}, {s(sT+3)}, {s(sT+4)}')
    e(f'v_add_u32 {v(sj_a+2)}, {s(sT+3)}, {v(sj_a+2)}')
    e(f'v_mad_u32_u24 {v(sj_a)}, {v(sj_a+2)}, {v(u+1)}, {v(li)}')
    e(f's_mul_i32 {s(sT+3)}, {s(sQt)}, {128*896}')
    e(f's_add_u32 {s(sXb)}, s4, {s(sT+3)}')
    e(f's_addc_u32 {s(sXb+1)}, s5, 0')
    e(f's_sub_u32 {s(sX)}, {s(sXb)}, 3072')
    e(f's_subb_u32 {s(sX+1)}, {s(sXb+1)}, 0')
    e(f's_and_b32 {s(sX+1)}, {s(sX+1)}, 0xffff')
    e(f's_mov_b32 {s(sX+2)}, {128*896+3072}')
    e(f's_mov_b32 {s(sX+3)}, 0x20000')
    e(f's_mov_b32 {s(sWR)}, s14')
    e(f's_and_b32 {s(sWR+1)}, s15, 0xffff')
    e(f's_mov_b32 {s(sWR+2)}, 896')
    e(f's_mov_b32 {s(sWR+3)}, 0x20000')
    e(f'buffer_load_dwordx4 {v(sj_x,4)}, {v(sj_a)}, {s(sX,4)}, 0 offen offset:3072')
    e(f'buffer_load_dwordx4 {v(sj_x+4,4)}, {v(sj_a)}, {s(sX,4)}, 0 offen offset:3088')
    e(f'buffer_load_dwordx4 {v(sj_w,4)}, {v(li)}, {s(sWR,4)}, 0 offen')
    e(f'buffer_load_dwordx4 {v(sj_w+4,4)}, {v(li)}, {s(sWR,4)}, 0 offen offset:16')
    e(f's_lshl_b32 {s(sT+3)}, {s(sHead)}, 9')
    e(f's_add_u32 {s(sWQb)}, s10, {s(sT+3)}')
    e(f's_addc_u32 {s(sWQb+1)}, s11, 0')
    e(f's_sub_u32 {s(sE)}, {s(sWQb)}, 3072')
    e(f's_subb_u32 {s(sE+1)}, {s(sWQb+1)}, 0')
    e(f's_and_b32 {s(sE+1)}, {s(sE+1)}, 0xffff')
    e(f's_sub_u32 {s(sE+2)}, {448*8192+3072}, {s(sT+3)}')
    e(f's_mov_b32 {s(sE+3)}, 0x20000')
    e(f's_mov_b32 {s(sO)}, {s(sE)}')
    e(f's_mov_b32 {s(sO+1)}, {s(sE+1)}')
    e(f's_mov_b32 {s(sO+2)}, {s(sE+2)}')
    e(f's_mov_b32 {s(sO+3)}, 0x20000')
    e(f's_mov_b32 {s(sOffE)}, 0')
    e(f's_mov_b32 {s(sOffO)}, 256')
    e(f's_mov_b32 {s(sInc)}, {64*8192}')
    e(f's_lshl_b32 {s(sRun)}, {s(sW)}, 12')
    e(f's_mov_b32 {s(sOffX)}, 0')
    e(f's_lshl_b32 {s(sXm0)}, {s(sW)}, 13')
    e(f's_add_u32 {s(sXm0)}, {s(sXm0)}, {XAREA}')

    def flat(g):
        for ops in g:
            for o in ops:
                e(o)
    flat(xdma_ops()); flat(dma_ops('E')); flat(dma_ops('O'))
    flat(xdma_ops()); flat(dma_ops('E')); flat(dma_ops('O'))
    flat(dma_ops('E')); flat(dma_ops('O'))
    DMAON[0] = 1
    e(f's_lshr_b32 {s(sT+3)}, {s(sHead)}, 1')
    e(f's_lshl_b32 {s(sT+3)}, {s(sT+3)}, 20')
    e(f's_add_u32 {s(sT+3)}, {s(sT+3)}, {1536*512 - 3072}')
    e(f's_add_u32 {s(sKb)}, s6, {s(sT+3)}')
    e(f's_addc_u32 {s(sKb+1)}, s7, 0')
    e(f's_add_u32 {s(sVb)}, s8, {s(sT+3)}')
    e(f's_addc_u32 {s(sVb+1)}, s9, 0')
    e(f's_mul_i32 {s(sT+3)}, {s(sHead)}, {256*896}')
    e(f's_add_u32 {s(sWOb)}, s12, {s(sT+3)}')
    e(f's_addc_u32 {s(sWOb+1)}, s13, 0')
    e(f's_sub_u32 {s(sWOb)}, {s(sWOb)}, 3072')
    e(f's_subb_u32 {s(sWOb+1)}, {s(sWOb+1)}, 0')
    e(f's_mov_b32 {s(sWS)}, s16')
    e(f's_and_b32 {s(sWS+1)}, s17, 0xffff')
    e(f's_mov_b32 {s(sWS+2)}, 0x10000000')
    e(f's_mov_b32 {s(sWS+3)}, 0x20000')
    e(f's_lshl_b32 {s(sT+3)}, {s(sQt)}, 2')
    e(f's_add_u32 {s(sT+3)}, {s(sT+3)}, {s(sW)}')
    e(f's_mul_i32 {s(sSt)}, {s(sT+3)}, {28*16384}')
    e(f's_lshl_b32 {s(sT+3)}, {s(sHead)}, 10')
    e(f's_add_u32 {s(sSt)}, {s(sSt)}, {s(sT+3)}')
    if WS_PART:
        e(f's_add_u32 {s(sSt)}, {s(sSt)}, {WS_PART}')
        e('s_nop 0')
    e(f's_mov_b32 {s(sThr)}, {fbits(THR)}')
    e(f's_lshl_b32 {s(sT+3)}, {s(wh)}, 13')
    e(f's_lshl_b32 {s(sT+4)}, {s(wl)}, 8')
    e(f's_add_u32 {s(sT+3)}, {s(sT+3)}, {s(sT+4)}')
    e(f'v_lshlrev_b32 {v(u)}, 9, {v(l4)}')
    e(f'v_add_u32 {v(u)}, {s(sT+3)}, {v(u)}')
    e(f'v_lshl_add_u32 {v(u+2)}, {v(cx)}, 4, {v(u)}')
    e(f'v_lshl_add_u32 {v(u+3)}, {v(c4)}, 4, {v(u)}')
    for j in range(4):
        e(f'v_add_u32 {v(u)}, {64*j - 1024*j + 3072}, {v(u+2)}')
        e(f'v_accvgpr_write_b32 {a(SV0+j)}, {v(u)}')
        e(f'v_add_u32 {v(u)}, {64*j - 1024*j + 3072}, {v(u+3)}')
        e(f'v_accvgpr_write_b32 {a(SV0+4+j)}, {v(u)}')
    e(f's_mul_i32 {s(sT+3)}, {s(sW)}, {64*896}')
    e(f'v_lshlrev_b32 {v(u+2)}, 4, {v(c4)}')
    e(f'v_mad_u32_u24 {v(u+2)}, {v(l4)}, {v(u+1)}, {v(u+2)}')
    e(f'v_add_u32 {v(u+2)}, {s(sT+3)}, {v(u+2)}')
    for j in range(4):
        e(f'v_add_u32 {v(u)}, {(14336 - 1024)*j + 3072}, {v(u+2)}')
        e(f'v_accvgpr_write_b32 {a(SV0+8+j)}, {v(u)}')
    e(f'v_lshrrev_b32 {v(u)}, 5, {v(vLane)}')
    e(f'v_lshlrev_b32 {v(vTr)}, 9, {v(u)}')
    e(f'v_bfe_u32 {v(u+2)}, {v(vLane)}, 2, 2')
    e(f'v_lshl_add_u32 {v(vTr)}, {v(u+2)}, 6, {v(vTr)}')
    e(f'v_bfe_u32 {v(u+2)}, {v(vLane)}, 4, 1')
    e(f'v_lshl_add_u32 {v(vTr)}, {v(u+2)}, 5, {v(vTr)}')
    e(f'v_bfe_u32 {v(u+2)}, {v(vLane)}, 0, 1')
    e(f'v_lshl_add_u32 {v(vTr)}, {v(u+2)}, 4, {v(vTr)}')
    e(f'v_bfe_u32 {v(u+2)}, {v(vLane)}, 1, 1')
    e(f'v_lshl_add_u32 {v(vTr)}, {v(u+2)}, 3, {v(vTr)}')
    for ks in range(4):
        e(f's_xor_b32 {s(sT+3)}, {s(sW)}, {ks}')
        e(f's_lshl_b32 {s(sT+3)}, {s(sT+3)}, 12')
        e(f'v_add_u32 {v(vWb+ks)}, {s(sT+3)}, {v(vTr)}')
        e(f'v_add_u32 {v(vWc+ks)}, {s(sT+3)}, {v(vTr)}')
    e(f's_mov_b32 {s(sRd)}, 0')
    e(f'v_add_u32 {v(vV)}, 0x10000, {v(vTr)}')
    e(f'v_bfe_u32 {v(u+2)}, {v(vLane)}, 2, 2')
    e(f'v_xor_b32 {v(u+2)}, {v(u+2)}, {v(u)}')
    e(f'v_lshlrev_b32 {v(u+2)}, 4, {v(u+2)}')
    e(f'v_and_b32 {v(u+3)}, 15, {v(vLane)}')
    e(f'v_lshl_add_u32 {v(u+2)}, {v(u+3)}, 6, {v(u+2)}')
    e(f'v_bfe_u32 {v(u+3)}, {v(vLane)}, 4, 1')
    e(f'v_lshl_add_u32 {v(u+2)}, {v(u+3)}, 11, {v(u+2)}')
    e(f'v_add_u32 {v(vXa0)}, {s(sXm0)}, {v(u+2)}')
    e(f'v_xor_b32 {v(vXa1)}, 32, {v(vXa0)}')
    e(f'v_bfe_u32 {v(u+2)}, {v(vLane)}, 2, 1')
    e(f'v_bfe_u32 {v(l4)}, {v(vLane)}, 3, 1')
    e(f'v_lshl_add_u32 {v(u+2)}, {v(u+2)}, 1, {v(l4)}')
    e(f'v_lshl_add_u32 {v(l4)}, {v(u+2)}, 2, {v(c4)}')
    e(f'v_xor_b32 {v(u+2)}, {v(u+2)}, {v(u)}')
    e(f'v_lshlrev_b32 {v(u+2)}, 4, {v(u+2)}')
    e(f'v_lshl_add_u32 {v(u+2)}, {v(l4)}, 6, {v(u+2)}')
    e(f'v_lshl_add_u32 {v(u+2)}, {v(u+3)}, 13, {v(u+2)}')
    e(f'v_add_u32 {v(vK0)}, 0x10000, {v(u+2)}')
    e(f'v_xor_b32 {v(vK1)}, 32, {v(vK0)}')
    e(f'v_and_b32 {v(u+2)}, 15, {v(vLane)}')
    e(f'v_sub_u32 {v(u+2)}, {v(u+2)}, {v(u+3)}')
    e(f'v_mov_b32 {v(u)}, 0x3f803f80')
    for tt in range(8):
        e(f'v_cmp_eq_u32 vcc, {2*tt}, {v(u+2)}')
        e(f'v_cndmask_b32 {v(u+3)}, 0, {v(u)}, vcc')
        for r in range(4):
            e(f'v_accvgpr_write_b32 {a(CB0+4*tt+r)}, {v(u+3)}')
    for r in range(0, 128, 2):
        e(f'v_mov_b64 {v(r,2)}, 0')
    for r in range(vSx, SJ, 2):
        e(f'v_mov_b64 {v(r,2)}, 0')
    for r in range(32):
        e(f'v_accvgpr_write_b32 {a(r)}, 0')
    e(f'v_mov_b32 {v(vL)}, 0')
    p.label('L_side')
    stamp()
    s1, s2_, mb, sd, rs, tt = sj_a + 3, sj_a + 4, sj_a + 5, sj_a + 6, sj_a + 7, sj_a + 8
    e(f'v_mov_b64 {v(s1+1,2)}, 0')
    e(f'v_mov_b32 {v(s1)}, 0')
    e(f's_mov_b32 {s(sT+3)}, 0x0fffffff')
    e(f's_mov_b32 {s(sT+4)}, 0x0fffffff')
    e(f's_mov_b64 exec, {s(sT+3,2)}')
    for r in range(8):
        e(f'v_dot2c_f32_bf16 {v(s1)}, {v(u)}, {v(sj_x+r)}')
        e(f'v_dot2c_f32_bf16 {v(s2_)}, {v(sj_x+r)}, {v(sj_x+r)}')
    e('s_mov_b64 exec, -1')
    for o in red32([s1, s2_], tt):
        e(o)
    for o in stats_code(s1, s2_, mb, sd, tt):
        e(o)
    e(f'v_rcp_f32 {v(rs)}, {v(sd)}')
    e(f'v_mov_b32 {v(s1)}, 0')
    for o in norm8(sj_x, sj_x, 8, mb, rs, tt):
        e(o)
    e(f's_mov_b64 exec, {s(sT+3,2)}')
    for r in range(8):
        e(f'v_dot2c_f32_bf16 {v(s1)}, {v(sj_x+r)}, {v(sj_w+r)}')
    e('s_mov_b64 exec, -1')
    for o in red32([s1], tt):
        e(o)
    e(f'v_cvt_pk_bf16_f32 {v(s1)}, 0, {v(s1)}')
    e(f'v_ashrrev_i32 {v(tt)}, 31, {v(s1)}')
    e(f'v_or_b32 {v(tt)}, 0x80000000, {v(tt)}')
    e(f'v_xor_b32 {v(s1)}, {v(s1)}, {v(tt)}')
    e(f'v_and_b32 {v(s1)}, 0xffff0000, {v(s1)}')
    e(f's_lshl_b32 {s(sT+2)}, {s(sQt)}, 7')
    e(f'v_add_u32 {v(sj_a+2)}, {s(sT+2)}, {v(sj_a+2)}')
    e(f'v_sub_u32 {v(tt)}, 0xffff, {v(sj_a+2)}')
    e(f'v_or_b32 {v(s1)}, {v(s1)}, {v(tt)}')
    e(f'v_lshrrev_b32 {v(mb)}, 16, {v(mb)}')
    e(f'v_or_b32 {v(mb)}, {v(mb)}, {v(sd)}')
    e(f'v_lshlrev_b32 {v(sj_a+2)}, 2, {v(sj_a+2)}')
    e(f's_mov_b32 {s(sT+3)}, 1')
    e(f's_mov_b32 {s(sT+4)}, 1')
    e(f's_mov_b32 {s(sT+2)}, {WS_KEYS}')
    e(f's_mov_b32 {s(sT+1)}, {WS_STATS}')
    e(f's_mov_b64 exec, {s(sT+3,2)}')
    e(f'buffer_store_dword {v(s1)}, {v(sj_a+2)}, {s(sWS,4)}, {s(sT+2)} offen')
    e(f'buffer_store_dword {v(mb)}, {v(sj_a+2)}, {s(sWS,4)}, {s(sT+1)} offen')
    e('s_mov_b64 exec, -1')
    e(f'v_mov_b32 {v(vC)}, {v(u)}')
    ones = vC
    e('s_nop 1')
    for r in range(SJ, 224, 2):
        e(f'v_mov_b64 {v(r,2)}, 0')
    stepA = Step([(v(16 * (j % 4), 16), v(XF + 4 * (j // 4), 4), v(16 * (j % 4), 16)) for j in range(16)],
                 tr_reads(lambda j: vWc + j // 4, lambda j: (j % 4) * 1024))
    stepB = Step([(v(64 + 16 * (j % 4), 16), v(XF + 4 * (j // 4), 4), v(64 + 16 * (j % 4), 16)) for j in range(16)],
                 tr_reads(lambda j: vWc + j // 4, lambda j: 16384 + (j % 4) * 1024))

    def xread(ks):
        return f'ds_read_b128 {v(XF+4*ks,4)}, {v(vXa0 + (ks & 1))} offset:{(ks >> 1) * 1024}'
    stamp()
    e(I('WAITV', waitv=('x', lambda k: 4)))
    e(waitring(lambda k: 0))
    e('s_barrier')
    stamp()
    for ks in range(4):
        e(xread(ks))
    for j in range(D):
        for o in stepA.reads(j):
            e(o)
    e(f'v_xor_b32 {v(vXa0)}, 0x1000, {v(vXa0)}')
    e(f'v_xor_b32 {v(vXa1)}, 0x1000, {v(vXa1)}')
    e(f's_mov_b32 {s(sCnt)}, 0')
    p.label('L_g1')
    for j in range(4 if 'nocs' not in ABL else 0):
        stepA.post[j].append(f'{MF16} {v(CS,4)}, {fb(j)}, {a(CB0+4*j,4)}, {v(CS,4)}')
        stepB.post[j].append(f'{MF16} {v(CS,4)}, {fb(j)}, {a(CB0+16+4*j,4)}, {v(CS,4)}')
    stepA.pre[4] += [waitring(lambda k: 2 * k + 2), 's_barrier']
    stepA.pre[5] += [f's_cmp_eq_u32 {s(sCnt)}, 4', I('s_cbranch_scc1 L_sw1', taken=lambda k, var: k == 4), 'L_sw1r:']
    xg = xdma_ops(first_also=[v(XF + 12, 4)])
    for j in range(4 if 'nox' not in ABL else 0):
        stepA.pre[6 + j] += xg[j]
    rg = dma_ops('E') + dma_ops('O')
    for j in range(6):
        stepA.pre[10 + j] += rg[j]
    stepB.pre[4] += rg[6]
    stepB.pre[5] += rg[7]
    dots = []
    for ks in range(4):
        for r in range(4):
            dots.append(f'v_dot2c_f32_bf16 {v(vSx)}, {v(ones)}, {v(XF+4*ks+r)}')
            dots.append(f'v_dot2c_f32_bf16 {v(vSxx)}, {v(XF+4*ks+r)}, {v(XF+4*ks+r)}')
    if 'nodot' not in ABL:
        stepA.spread(dots[:16], 0, 15)
        stepB.spread(dots[16:24], 0, 6)
        stepB.spread(dots[24:], 7, 14)
    stepB.pre[0] += [f's_add_u32 {s(sRd)}, {s(sRd)}, 0x8000', f's_and_b32 {s(sRd)}, {s(sRd)}, 0x1ffff']
    for ks, g in enumerate((2, 6, 8, 12)):
        stepB.val[g].append(f'v_add_u32 {v(vWc+ks)}, {s(sRd)}, {v(vWb+ks)}')
    stepB.pre[3].append(I('WAITV', waitv=('x', lambda k: 4 * min(k + 2, 7))))
    for ks in range(4):
        stepB.pre[4 * ks + 3].append(xread(ks))
    stepB.post[15] += [f'v_xor_b32 {v(vXa0)}, 0x1000, {v(vXa0)}', f'v_xor_b32 {v(vXa1)}, 0x1000, {v(vXa1)}']
    stepB.pre[14] += [f's_add_u32 {s(sCnt)}, {s(sCnt)}, 1', f's_cmp_lt_u32 {s(sCnt)}, 7']
    stepA.emit(p, stepB)
    stepB.emit(p, stepA)
    e('s_cbranch_scc1 L_g1', taken=lambda k, var: k < 6)

    p.label('L_t1')
    stamp()

    def kreads(off):
        def f(j):
            st = 2 * ORD[j // 2] + (j % 2)
            return [f'ds_read_b128 {fb(j)}, {v(vK0 + (st & 1))} offset:{off + (st >> 1) * 1024}']
        return f

    def Sstep(X, C0, off):
        return Step([(v(X, 16), v(QF + 4 * j, 4), v(X, 16) if j else C0) for j in range(16)], kreads(off))

    def PVstep(P, off, order=None):
        order = order or [(j // 8, j % 8) for j in range(16)]
        return Step([(Oreg(tl), v(P + 4 * ks, 4), Oreg(tl)) for ks, tl in order],
                    tr_reads(lambda j: vV, lambda j: off + (order[j][0] * 8 + order[j][1]) * 1024))
    S0 = Sstep(X0, '0', 2 * 16384)
    S1 = Sstep(X1, '0', 0)
    ta, tb = vTmp, vTmp + 1
    e(f'v_bfe_u32 {v(ta)}, {v(vLane)}, 1, 1')
    e(f'v_lshlrev_b32 {v(ta)}, 9, {v(ta)}')
    e(f'v_bfe_u32 {v(tb)}, {v(vLane)}, 0, 1')
    e(f'v_lshl_add_u32 {v(ta)}, {v(tb)}, 8, {v(ta)}')
    e(f'v_lshrrev_b32 {v(tb)}, 4, {v(vLane)}')
    e(f'v_lshl_add_u32 {v(ta)}, {v(tb)}, 6, {v(ta)}')
    e(f'v_bfe_u32 {v(tb)}, {v(vLane)}, 2, 2')
    e(f'v_lshl_add_u32 {v(ta)}, {v(tb)}, 2, {v(ta)}')
    e(f's_lshl_b32 {s(sT)}, {s(sW)}, 13')
    e(f's_add_u32 {s(sT)}, {s(sT)}, {XAREA}')
    e(f'v_add_u32 {v(ta)}, {s(sT)}, {v(ta)}')
    e(f'v_add_u32 {v(tb)}, {XAREA}, {v(vL16)}')
    e(I('WAITV', waitv=('x', lambda k: 36)))
    e('s_waitcnt lgkmcnt(0)')
    for r in range(4):
        e(f'ds_write_b32 {v(ta)}, {v(CS+r)} offset:{16*r}')
    t2 = vTmp + 2
    e(f'v_mov_b32 {v(t2)}, {v(vSx)}')
    e(f'v_mov_b32 {v(t2+1)}, {v(vSxx)}')
    e(f'v_permlane32_swap_b32 {v(vSx)}, {v(t2)}')
    e(f'v_permlane32_swap_b32 {v(vSxx)}, {v(t2+1)}')
    e(waitring(lambda k: 16))
    e('s_waitcnt lgkmcnt(0)')
    e('s_barrier')
    R = XF
    for w_ in range(4):
        e(f'ds_read_b128 {v(R+4*w_,4)}, {v(tb)} offset:{8192*w_}')
    for j in range(D):
        for o in S0.reads(j):
            e(o)
    e(f'v_add_f32 {v(vSx)}, {v(vSx)}, {v(t2)}')
    e(f'v_add_f32 {v(vSxx)}, {v(vSxx)}, {v(t2+1)}')
    mb, sd = t2, t2 + 1
    for o in stats_code(vSx, vSxx, mb, sd, t2 + 2):
        e(o)
    e(f'v_rcp_f32 {v(vC)}, {v(sd)}')
    e(f'v_cvt_pk_bf16_f32 {v(mb)}, -{v(mb)}, -{v(mb)}')
    e(f'v_mul_f32 {v(vC)}, {fbits(LOG2E/16)}, {v(vC)}')
    e(f'v_cmp_gt_u32 vcc, 32, {v(vLane)}')
    e(f'v_cndmask_b32 {v(BP)}, 0, {v(mb)}, vcc')
    e(f'v_cndmask_b32 {v(BP+4)}, {v(mb)}, 0, vcc' .replace('v_cndmask_b32', 'v_cndmask_b32_e64'))
    for pp in range(4):
        e(f'v_add_f32 {v(R+pp)}, {v(R+pp)}, {v(R+4+pp)}')
        e(f'v_add_f32 {v(R+8+pp)}, {v(R+8+pp)}, {v(R+12+pp)}')
    for pp in range(4):
        e(f'v_add_f32 {v(R+pp)}, {v(R+pp)}, {v(R+8+pp)}')
    for pp in range(4):
        e(f'v_cvt_pk_bf16_f32 {v(R+4+pp)}, {v(R+pp)}, {v(R+pp)}')
    for pp in range(4):
        e(f'v_lshlrev_b32 {v(R+4+pp)}, 16, {v(R+4+pp)}')
    for pp in range(4):
        e(f'v_sub_f32 {v(R+pp)}, {v(R+pp)}, {v(R+4+pp)}')
    for pp in range(4):
        e(f'v_cvt_pk_bf16_f32 {v(AP+2*pp)}, {v(R+4+pp)}, {v(R+pp)}')
    conv = []
    for j in range(16):
        src = 16 * ORD[j // 2] + 8 * (j % 2)
        for r in range(8):
            conv.append(f'v_mul_f32 {v(src+r)}, {v(src+r)}, {v(vC)}')
        for r in range(4):
            conv.append(f'v_cvt_pk_bf16_f32 {v(QF+4*j+r)}, {v(src+2*r)}, {v(src+2*r+1)}')
    rg = dma_ops('E') + dma_ops('O')
    for c in range(8):
        b = ORD[c]
        e(f'{MF} {v(16*b,16)}, {v(AP+2*(b>>1),4)}, {v(BP+4*(b&1),4)}, {v(16*b,16)}')
        if c < 2:
            for o in rg[2 * c] + rg[2 * c + 1]:
                e(o)
        else:
            for o in conv[8 * (c - 2):8 * (c - 1)]:
                e(o)
    p.label('L_s0')
    S0.spread(conv[48:], 0, 14)
    for j in range(4):
        S0.pre[1 + 3 * j] += rg[4 + j]
    S0.val[9] += [f'v_xor_b32 {v(vK0)}, 0x10000, {v(vK0)}', f'v_xor_b32 {v(vK1)}, 0x10000, {v(vK1)}']
    S0.emit(p, S1)
    p.label('L_s1')
    PVa = PVstep(P0, 3 * 16384)
    Sa = Sstep(X0, v(Z, 16), 2 * 16384)
    PVb = PVstep(P1, 1 * 16384)
    Sb = Sstep(X1, v(Z, 16), 0)
    zero = [f'v_mov_b64 {v(r,2)}, 0' for r in list(range(Z, Z + 16, 2)) + list(range(OV, SJ, 2))]
    S1.val[0] += zero[:5]
    S1.val[1] += zero[5:10]
    mx, slots = softmax_ops(X0, P0)
    allo = []
    zi = 10
    for n, sl in enumerate(slots):
        allo += sl
        if n < len(mx):
            allo.append(mx[n])
        allo += zero[zi:zi + 2]; zi += 2
    assert zi >= len(zero)
    allo += [f'v_cmp_lt_f32 vcc, {s(sThr)}, |{v(vMx)}|'.replace('v_cmp_lt_f32', 'v_cmp_lt_f32_e64')]
    S1.spread(allo, 2, 15)
    S1.pre[3] += [waitring(lambda k: 18), 's_barrier']
    rg = dma_ops('E')
    for j in range(4):
        S1.pre[5 + 2 * j] += rg[j]
    S1.emit(p, PVa)
    e('s_cbranch_vccnz L_fix0', taken=lambda k, var: var == 1)
    p.label('L_fix0r')
    stamp()
    e(f's_mov_b32 {s(sCnt)}, 0')
    p.label('L_fl')

    def sched_pair(PV, S, Xc, Pn, jfun, second):
        PV.val[0].append(f'v_add_f32 {v(vL)}, {v(vL)}, {v(vLc)}')
        mx, slots = softmax_ops(Xc, Pn)
        npv = 9
        g = 2
        for n in range(npv):
            PV.val[g] += slots[n]
            g += 1
            if n % 2 == 1:
                PV.val[g] += mx[n - 1:n + 1]
                g += 1
        assert g <= 16
        if S is None:
            return slots[npv:]
        rem = slots[npv:]
        for n, sl in enumerate(rem):
            S.val[n + (n > 2)] += sl
        S.val[13].append(f'v_cmp_lt_f32 vcc, {s(sThr)}, {v(vMx)}')
        S.pre[3] += [waitring(lambda k: 20 + 2 * jfun(k)), 's_barrier']
        rg = dma_ops('O') + dma_ops('E')
        for j, gg in enumerate((4, 5, 6, 7, 10, 11, 12, 13)):
            S.pre[gg] += rg[j]
        if second:
            S.pre[9] += [f's_cmp_eq_u32 {s(sCnt)}, 5', I('s_cbranch_scc1 L_sw2', taken=lambda k, var: k == 5), 'L_sw2r:']
    sched_pair(PVa, Sa, X1, P1, lambda k: 2 * k, False)
    sched_pair(PVb, Sb, X0, P0, lambda k: 2 * k + 1, True)
    Sa.val[1].append(f'v_xor_b32 {v(vV)}, 0x10000, {v(vV)}')
    PVb.val[1] += [f'v_xor_b32 {v(vK0)}, 0x10000, {v(vK0)}', f'v_xor_b32 {v(vK1)}, 0x10000, {v(vK1)}']
    Sb.pre[14] += [f's_add_u32 {s(sCnt)}, {s(sCnt)}, 1']
    PVa.emit(p, Sa)
    Sa.emit(p, PVb)
    e('s_cbranch_vccnz L_fixa', taken=lambda k, var: var == 1)
    p.label('L_fixar')
    PVb.emit(p, Sb)
    Sb.emit(p, PVa)
    e('s_cbranch_vccnz L_fixb', taken=lambda k, var: var == 1)
    p.label('L_fixbr')
    e(f's_cmp_lt_u32 {s(sCnt)}, 7')
    e('s_cbranch_scc1 L_fl', taken=lambda k, var: k < 6)
    p.label('L_pv14')
    stamp()
    PV14 = PVstep(P0, 3 * 16384)
    TORD = [6, 7, 0, 1, 2, 3, 4, 5]
    PV15 = PVstep(P1, 1 * 16384, order=[(j % 2, TORD[j // 2]) for j in range(16)])
    PV14.val[0].append(f'v_add_f32 {v(vL)}, {v(vL)}, {v(vLc)}')
    mx, slots = softmax_ops(X1, P1)
    allo = []
    for n, sl in enumerate(slots):
        allo += sl
        if n < len(mx):
            allo.append(mx[n])
    allo.append(f'v_cmp_lt_f32 vcc, {s(sThr)}, {v(vMx)}')
    PV14.spread(allo, 2, 15)
    PV14.val[9].append(f'v_xor_b32 {v(vV)}, 0x10000, {v(vV)}')
    PV14.emit(p, PV15)
    e('s_cbranch_vccnz L_fixl', taken=lambda k, var: var == 1)
    p.label('L_fixlr')
    vG = vK0

    def Gstep(X):
        return Step([(v(X, 16), v(QF + 4 * j, 4), v(X, 16) if j else '0') for j in range(16)],
                    tr_reads(lambda j: vG, lambda j: (2 * TORD[j // 2] + j % 2) * 1024))
    G0, Ga, Gb, G13 = Gstep(X0), Gstep(X1), Gstep(X0), Gstep(X1)
    PV15.val[0] += [f'v_add_f32 {v(vL)}, {v(vL)}, {v(vLc)}', f'v_add_u32 {v(vG)}, {6*16384}, {v(vTr)}']
    PV15.val[1] += [f'v_mov_b32 {v(vLc)}, {v(vL)}']
    PV15.val[2] += [f'v_permlane32_swap_b32 {v(vL)}, {v(vLc)}', f'v_add_f32 {v(vL)}, {v(vL)}, {v(vLc)}',
                    f'v_rcp_f32 {v(vRl)}, {v(vL)}']
    PV15.pre[1] += [waitring(lambda k: 47), 's_barrier']
    rg = dma_ops('O') + dma_ops('E')
    for j in range(8):
        PV15.pre[2 + j] += rg[j]
    oconv = []
    for j in range(16):
        tl = TORD[j // 2]
        ops = []
        if tl >= 6:
            for r in range(8):
                ops.append(f'v_accvgpr_read_b32 {v(Z+r)}, {a(16*(tl-6)+8*(j%2)+r)}')
            src = Z
        else:
            src = OV + 16 * tl + 8 * (j % 2)
        for r in range(4):
            ops.append(f'v_cvt_pk_bf16_f32 {v(QF+4*j+r)}, {v(src+2*r)}, {v(src+2*r+1)}')
        oconv.append(ops)
    flat_c = [o for ops in oconv for o in ops]
    PV15.spread(flat_c[:56], 3, 15)
    G0.spread(flat_c[56:], 0, 9)
    PV15.emit(p, G0)

    def adv(G):
        G.val[9] += [f'v_add_u32 {v(vG)}, 0x4000, {v(vG)}', f'v_and_b32 {v(vG)}, 0x1ffff, {v(vG)}']

    def epi_ops(X, Pb):
        ops = []
        for g in range(2):
            for r in range(8):
                ops.append(f'v_mul_f32 {v(X+8*g+r)}, {v(X+8*g+r)}, {v(vRl)}')
            for r in range(4):
                ops.append(f'v_cvt_pk_bf16_f32 {v(Pb+4*g+r)}, {v(X+8*g+2*r)}, {v(X+8*g+2*r+1)}')
            if 'nost' not in ABL:
                ops.append(f'buffer_store_dwordx4 {v(Pb+4*g,4)}, {v(vL16)}, {s(sWS,4)}, {s(sSt)} offen{STFLAG}')
            ops.append(f's_add_u32 {s(sSt)}, {s(sSt)}, 0x4000')
        return ops
    p.label('L_g0')
    stamp()
    adv(G0)
    G0.emit(p, Ga)
    e(f's_mov_b32 {s(sCnt)}, 0')
    p.label('L_g4')
    adv(Ga); adv(Gb)
    Ga.spread(epi_ops(X0, P0), 2, 15)
    Gb.spread(epi_ops(X1, P1), 2, 15)
    Ga.pre[1] += [waitring(lambda k: 49 + 2 * k), 's_barrier']
    rg = dma_ops('O', clamp=13 * 64) + dma_ops('E', clamp=13 * 64)
    for j in range(4):
        Ga.pre[3 + 3 * j] += rg[j]
        Gb.pre[1 + 3 * j] += rg[4 + j]
    Gb.pre[14] += [f's_add_u32 {s(sCnt)}, {s(sCnt)}, 1']
    Gb.post[15] += [f's_cmp_lt_u32 {s(sCnt)}, 6']
    Ga.emit(p, Gb)
    Gb.emit(p, Ga)
    e('s_cbranch_scc1 L_g4', taken=lambda k, var: k < 5)
    p.label('L_g13')
    stamp()
    G13.spread(epi_ops(X0, P0), 2, 15)
    G13.emit(p, None)
    for o in epi_ops(X1, P1):
        e(o)
    if PROF:
        stamp()
        e('s_waitcnt vmcnt(0)')
        stamp()
        e(f's_memrealtime {s(sPF + 30, 2)}')
        e(f's_lshl_b32 {s(sT)}, s2, 2')
        e(f's_add_u32 {s(sT)}, {s(sT)}, {s(sW)}')
        e(f's_lshl_b32 {s(sT)}, {s(sT)}, 6')
        e(f's_add_u32 {s(sT)}, {s(sT)}, {WS_PROF}')
        e('v_mov_b32 v16, 0')
        for n in range(16):
            e(f'v_mov_b32 {v(n)}, {s(sPF + 2 * n)}')
        e('s_mov_b64 exec, 1')
        for n in range(4):
            e(f'buffer_store_dwordx4 {v(4*n,4)}, v16, {s(sWS,4)}, {s(sT)} offen offset:{16*n}')
    p.label('L_end')
    e('s_endpgm')
    p.label('L_sw1')
    e(f's_mov_b32 {s(sE)}, {s(sKb)}')
    e(f's_and_b32 {s(sE+1)}, {s(sKb+1)}, 0xffff')
    e(f's_mov_b32 {s(sE+2)}, {512*512+3072}')
    e(f's_mov_b32 {s(sO)}, {s(sVb)}')
    e(f's_and_b32 {s(sO+1)}, {s(sVb+1)}, 0xffff')
    e(f's_mov_b32 {s(sO+2)}, {512*512+3072}')
    e(f's_mov_b32 {s(sOffE)}, 0')
    e(f's_mov_b32 {s(sOffO)}, 0')
    e(f's_mov_b32 {s(sInc)}, 16384')
    for j in range(8):
        e(f'v_accvgpr_read_b32 {v(vDE+j)}, {a(SV0+j)}')
    e('s_branch L_sw1r')
    p.label('L_sw2')
    e(f's_mov_b32 {s(sE)}, {s(sWOb)}')
    e(f's_and_b32 {s(sE+1)}, {s(sWOb+1)}, 0xffff')
    e(f's_mov_b32 {s(sE+2)}, {256*896+3072}')
    e(f's_mov_b32 {s(sO)}, {s(sWOb)}')
    e(f's_and_b32 {s(sO+1)}, {s(sWOb+1)}, 0xffff')
    e(f's_mov_b32 {s(sO+2)}, {256*896+3072}')
    e(f's_mov_b32 {s(sOffE)}, 0')
    e(f's_mov_b32 {s(sOffO)}, 64')
    e(f's_mov_b32 {s(sInc)}, 128')
    for j in range(8):
        e(f'v_accvgpr_read_b32 {v(vDE+j)}, {a(SV0+8+j%4)}')
    e('s_branch L_sw2r')
    fix_code(p, 'L_fix0', 'L_fix0r', X0, X1, P0, first=True)
    fix_code(p, 'L_fixa', 'L_fixar', X1, X0, P1)
    fix_code(p, 'L_fixb', 'L_fixbr', X0, X1, P0)
    fix_code(p, 'L_fixl', 'L_fixlr', X1, None, P1)
    return p


STFLAG = OPT.get('st', '')
if STFLAG:
    STFLAG = ' ' + STFLAG.replace('+', ' ')


def kd(name, nv, acc, ns=102):
    return f'''.p2align 6
.amdhsa_kernel {name}
  .amdhsa_next_free_vgpr {nv}
  .amdhsa_next_free_sgpr {ns}
  .amdhsa_accum_offset {acc}
  .amdhsa_group_segment_fixed_size 0
  .amdhsa_kernarg_size 104
  .amdhsa_user_sgpr_count 2
  .amdhsa_user_sgpr_kernarg_segment_ptr 1
  .amdhsa_system_sgpr_workgroup_id_x 1
.end_amdhsa_kernel
'''


def main():
    import gen_small
    ks = [('main_kernel', gen_main(), (256, 256, 163840), (368, 256), (0, 1))]
    ks += gen_small.kernels(OPT)
    only = OPT.get('only')
    if only:
        ks = [k for k in ks if k[0].split('_')[0] in only.split(',')]
    out = []
    for n, _, (g, b, l), _, _ in ks:
        out.append(f'; @launch kernel={n} grid=({g},1,1) block=({b},1,1) lds={l}')
    out.append('.amdgcn_target "amdgcn-amd-amdhsa--gfx950"')
    out.append('.text')
    for n, p, _, _, variants in ks:
        out.append(f'.globl {n}\n.p2align 8\n.type {n},@function')
        out.append(p.finalize(variants))
        if OPT.get('est'):
            p.estimate()
    out.append('.section .rodata,"a"')
    for n, _, _, (nv, acc), _ in ks:
        out.append(kd(n, nv, acc))
    open(sys.argv[1], 'w').write('\n'.join(out))


if __name__ == '__main__':
    main()
```

```python
import re

REG_RE = re.compile(r'\b([vas])(\d+)\b|\b([vas])\[(\d+):(\d+)\]|\b(vcc|exec|m0)\b')
LENIENT = False
TRANS = ('v_exp_f32', 'v_rcp_f32', 'v_sqrt_f32', 'v_rsq_f32', 'v_log_f32')


def regs_of(tok):
    out = []
    for m in REG_RE.finditer(tok):
        if m.group(1):
            out.append(m.group(1) + m.group(2))
        elif m.group(3):
            out += [m.group(3) + str(i) for i in range(int(m.group(4)), int(m.group(5)) + 1)]
        else:
            out.append(m.group(6))
    return out


def split_ops(s):
    ops, depth, cur = [], 0, ''
    for ch in s:
        if ch == '[':
            depth += 1
        if ch == ']':
            depth -= 1
        if ch == ',' and depth == 0:
            ops.append(cur.strip()); cur = ''
        else:
            cur += ch
    if cur.strip():
        ops.append(cur.strip())
    return ops


class I:
    def __init__(self, text, also=(), taken=None, stream=None, waitv=None):
        self.text = text
        self.taken = taken
        self.stream = stream
        self.waitv = waitv
        self.dst, self.src = [], []
        self.dpp = False
        self.need_l = None
        self.need_v = None
        self.nop = 0
        t = text.split(';')[0].strip()
        if t.endswith(':'):
            self.kind = 'label'; self.op = t[:-1]; return
        if t == '' or t.startswith('.'):
            self.kind = 'dir'; self.op = ''; return
        sp = t.split(None, 1)
        op = self.op = sp[0]
        rest = sp[1] if len(sp) > 1 else ''
        ops = split_ops(rest)
        self.ops = ops
        R = [regs_of(o) for o in ops]
        allr = lambda lst: [r for x in lst for r in x]
        if op == 'WAITV':
            self.kind = 'waitv'
        elif op.startswith('v_mfma'):
            self.kind = 'mfma'; self.dst = R[0]; self.src = allr(R[1:])
            self.A, self.B, self.C = R[1], R[2], R[3]
            self.passes = 8 if '32x32' in op else 4
        elif op.startswith('v_permlane'):
            self.kind = 'perm'; self.dst = allr(R); self.src = allr(R)
        elif op.startswith('v_readlane') or op.startswith('v_readfirstlane'):
            self.kind = 'rdlane'; self.dst = R[0]; self.src = allr(R[1:])
        elif op.startswith('v_'):
            self.kind = 'valu'
            if op.startswith(TRANS):
                self.kind = 'trans'
            if op.startswith('v_dot'):
                self.kind = 'dot'
            self.dst = list(R[0]); self.src = allr(R[1:])
            if op.startswith(('v_fmac', 'v_dot2c', 'v_writelane')):
                self.src += R[0]
            if op.startswith(('v_add_co', 'v_sub_co', 'v_addc_co', 'v_div_scale')):
                self.dst += R[1]; self.src = allr(R[2:])
            if op.startswith(('v_div_fmas',)) or (op.startswith('v_cndmask') and len(ops) == 3):
                self.src.append('vcc')
            if 'quad_perm' in t or 'row_' in t:
                self.dpp = True
                self.src += R[0]
        elif op.startswith('ds_read'):
            self.kind = 'dsr'; self.dst = R[0]; self.src = allr(R[1:])
        elif op.startswith('ds_'):
            self.kind = 'dsw'; self.src = allr(R)
        elif op.startswith(('buffer_load', 'global_load')):
            if re.search(r'\blds\b', t):
                self.kind = 'dma'; self.src = allr(R) + ['m0']
            else:
                self.kind = 'vld'; self.dst = R[0]; self.src = allr(R[1:])
        elif op.startswith(('buffer_store', 'global_store')):
            self.kind = 'vst'; self.src = allr(R)
            self.data = R[0] if op.startswith('buffer') else R[1]
        elif op.startswith(('buffer_atomic', 'global_atomic')):
            self.kind = 'vld'; self.src = allr(R)
            self.dst = R[0] if 'sc0' in t else []
        elif op == 's_waitcnt':
            self.kind = 'wait'
            m = re.search(r'vmcnt\((\d+)\)', t); self.wv = int(m.group(1)) if m else None
            m = re.search(r'lgkmcnt\((\d+)\)', t); self.wl = int(m.group(1)) if m else None
        elif op == 's_nop':
            self.kind = 'nop'; self.n = int(ops[0]) + 1
        elif op.startswith(('s_branch', 's_cbranch')):
            self.kind = 'br'; self.target = ops[0]
            if 'vcc' in op:
                self.src = ['vcc']
        elif op == 's_call_b64':
            self.kind = 'call'; self.target = ops[1]; self.dst = R[0]
        elif op == 's_setpc_b64':
            self.kind = 'ret'; self.src = R[0]
        elif op == 's_endpgm':
            self.kind = 'end'
        elif op.startswith(('s_load', 's_memtime', 's_memrealtime')):
            self.kind = 'smem'; self.dst = R[0]; self.src = allr(R[1:])
        elif op in ('s_barrier', 's_setprio', 's_sleep'):
            self.kind = 'misc'
        elif op.startswith('s_cmp') or op.startswith('s_bitcmp'):
            self.kind = 'salu'; self.src = allr(R)
        elif op.startswith('s_'):
            self.kind = 'salu'; self.dst = R[0]; self.src = allr(R[1:])
        else:
            raise ValueError('unknown op ' + text)
        self.also = [r for a in also for r in regs_of(a)]


VALUK = ('valu', 'trans', 'dot', 'perm', 'rdlane')


class Prog:
    def __init__(self, name):
        self.name = name
        self.ins = []

    def e(self, text, **kw):
        if isinstance(text, I):
            self.ins.append(text); return text
        i = I(text, **kw)
        self.ins.append(i)
        return i

    def label(self, l):
        self.e(l + ':')

    def trace(self, variant=0, limit=400000):
        lab = {i.op: n for n, i in enumerate(self.ins) if i.kind == 'label'}
        cnt = {}
        pc = 0
        out = []
        stack = []
        while pc < len(self.ins):
            i = self.ins[pc]
            if i.kind not in ('label', 'dir'):
                k = cnt.get(pc, 0); cnt[pc] = k + 1
                out.append((pc, k))
                if len(out) > limit:
                    raise RuntimeError('trace too long')
                if i.kind == 'end':
                    break
                if i.kind == 'call':
                    stack.append(pc + 1); pc = lab[i.target]; continue
                if i.kind == 'ret':
                    pc = stack.pop(); continue
                if i.kind == 'br':
                    tk = True if i.op == 's_branch' else (i.taken(k, variant) if i.taken else False)
                    if tk:
                        pc = lab[i.target]; continue
            pc += 1
        return out

    def _waits(self, tr):
        lq, vq = [], []
        seq = {}
        for pc, k in tr:
            i = self.ins[pc]
            touched = set(i.src) | set(i.dst) | set(getattr(i, 'also', []))
            idx = -1
            for n, (regs, smem) in enumerate(lq):
                if regs & touched:
                    idx = n
            if idx >= 0:
                need = len(lq) - 1 - idx
                if any(s for _, s in lq):
                    need = 0
                i.need_l = need if i.need_l is None else min(i.need_l, need)
            idx = -1
            for n, (regs, st, sq) in enumerate(vq):
                if regs & touched:
                    idx = n
                if i.kind == 'waitv' and st == i.waitv[0] and sq < i.waitv[1](k):
                    idx = n
            if i.kind == 'waitv':
                assert LENIENT or seq.get(i.waitv[0], 0) >= i.waitv[1](k), ('waitv for unissued DMA', i.text, k, seq, i.waitv[1](k))
            if idx >= 0:
                need = len(vq) - 1 - idx
                i.need_v = need if i.need_v is None else min(i.need_v, need)
            wl, wv = i.need_l, i.need_v
            if i.kind == 'wait':
                wl, wv = i.wl, i.wv
            if wl is not None:
                if any(s for _, s in lq) and wl > 0:
                    pass
                else:
                    lq = lq[len(lq) - wl:] if wl < len(lq) and wl > 0 else ([] if wl == 0 else lq)
            if wv is not None:
                vq = vq[len(vq) - wv:] if 0 < wv < len(vq) else ([] if wv == 0 else vq)
            if i.kind == 'dsr':
                lq.append((set(i.dst), False))
            elif i.kind == 'dsw':
                lq.append((set(), False))
            elif i.kind == 'smem':
                lq.append((set(i.dst), True))
            elif i.kind in ('vld', 'vst', 'dma'):
                st = i.stream
                sq = seq.get(st, 0)
                seq[st] = sq + 1
                vq.append((set(i.dst), st, sq))

    def _hazards(self, tr):
        t = 0
        last_mfma_t, last_mfma_p = -100, 0
        wr = {}
        mfma_d = {}
        mfma_c = {}
        st_data = {}
        changed = False
        for pc, k in tr:
            i = self.ins[pc]
            if i.kind == 'waitv' and i.need_v is None:
                continue
            if i.kind != 'waitv' and (i.need_l is not None or i.need_v is not None):
                t += 1
            t0 = t + i.nop
            if i.kind == 'mfma':
                t0 = max(t0, last_mfma_t + last_mfma_p)
            req = t0

            def need(pt, ws):
                nonlocal req
                req = max(req, pt + 1 + ws)
            isv = i.kind in VALUK
            for r in i.src:
                if r in wr:
                    pt, pk, pi = wr[r]
                    if pk in VALUK:
                        if i.kind == 'mfma':
                            need(pt, 3 if pk == 'dot' else 2)
                        if pk == 'trans' and isv and i.kind != 'trans':
                            need(pt, 1)
                        if pk == 'trans' and i.kind in ('vst', 'dsw'):
                            need(pt, 1)
                        if pk == 'dot' and not (i.kind == 'dot' and i.op == pi.op and r in i.dst):
                            need(pt, 3)
                        if i.kind == 'perm' or i.dpp:
                            need(pt, 2)
                        if i.kind == 'rdlane' and r[0] == 'v' and r != 'vcc':
                            need(pt, 1)
                        if r[0] == 's' or r == 'vcc':
                            if isv:
                                need(pt, 4 if (i.kind == 'rdlane' or i.op.startswith('v_div_fmas')) else 2)
                            if i.kind in ('vld', 'vst', 'dma'):
                                need(pt, 5)
                            if i.kind in ('br', 'salu'):
                                need(pt, 1)
                    if pk == 'salu' and r == 'm0' and i.kind == 'dma':
                        need(pt, 1)
                if r in mfma_d:
                    pt, pi = mfma_d[r]
                    P = pi.passes
                    if i.kind == 'mfma':
                        if r in i.A or r in i.B:
                            need(pt, P + 4)
                        elif not (i.C == pi.dst and i.passes == P):
                            need(pt, P + 2)
                    else:
                        need(pt, P + 4)
            for r in i.dst:
                if r in mfma_d:
                    pt, pi = mfma_d[r]
                    if i.kind != 'mfma':
                        need(pt, pi.passes + 4)
                    elif not (i.C == pi.dst):
                        need(pt, pi.passes + 2)
                if r in mfma_c and (isv or i.kind in ('dsr', 'vld')):
                    pt, P = mfma_c[r]
                    need(pt, P - 1)
                if r in st_data and i.kind != 'vst':
                    need(st_data[r], 2)
                if r in wr and wr[r][1] == 'dot' and not (i.kind == 'dot' and i.op == wr[r][2].op):
                    need(wr[r][0], 3)
            if req > t0:
                i.nop += req - t0 if i.kind != 'mfma' else req - (t + i.nop)
                changed = True
                t0 = req
            t = t0
            if i.kind == 'mfma':
                last_mfma_t, last_mfma_p = t, i.passes
                for r in i.dst:
                    mfma_d[r] = (t, i); wr.pop(r, None)
                for r in i.C:
                    mfma_c[r] = (t, i.passes)
            else:
                for r in i.dst:
                    wr[r] = (t, i.kind, i); mfma_d.pop(r, None)
            if i.kind == 'vst' and len(i.data) >= 3:
                for r in i.data:
                    st_data[r] = t
            t += i.n if i.kind == 'nop' else 1
        return changed

    def finalize(self, variants=(0,), verbose=True):
        trs = [self.trace(v) for v in variants]
        for _ in range(3):
            for tr in trs:
                self._waits(tr)
        for _ in range(10):
            ch = False
            for tr in trs:
                ch |= self._hazards(tr)
            if not ch:
                break
        seen = set(pc for tr in trs for pc, _ in tr)
        unseen = [i.text for n, i in enumerate(self.ins) if n not in seen and i.kind not in ('label', 'dir')]
        if unseen and verbose:
            print(f'[{self.name}] {len(unseen)} instructions never traced, first: {unseen[:3]}')
        out = []
        for i in self.ins:
            w = []
            if i.kind not in ('label', 'dir', 'wait'):
                if i.need_v is not None:
                    w.append('vmcnt(%d)' % min(i.need_v, 63))
                if i.need_l is not None:
                    w.append('lgkmcnt(%d)' % min(i.need_l, 15))
            if w:
                out.append('  s_waitcnt ' + ' '.join(w))
            n = i.nop
            while n > 0:
                m = min(n, 16)
                out.append('  s_nop %d' % (m - 1))
                n -= m
            if i.kind == 'waitv':
                continue
            out.append(i.text if i.kind in ('label', 'dir') else '  ' + i.text)
        self.trs = trs
        return '\n'.join(out) + '\n'

    def estimate(self):
        tr = self.trs[0]
        t = 0
        last = -100
        region = {}
        lab_of = {}
        cur = 'start'
        for n, i in enumerate(self.ins):
            if i.kind == 'label':
                cur = i.op
            lab_of[n] = cur
        order = []
        for pc, k in tr:
            i = self.ins[pc]
            t0 = t
            if i.need_l is not None or i.need_v is not None:
                t += 4
            t += 4 * i.nop
            if i.kind == 'mfma':
                t = max(t, last)
                last = t + 4 * i.passes
                t += 8
            elif i.kind == 'trans':
                t += 8
            elif i.kind == 'dot':
                t += 14
            elif i.kind == 'dma':
                t += 12
            elif i.kind == 'nop':
                t += 4 * i.n
            elif i.kind == 'waitv':
                pass
            else:
                t += 4
            l = lab_of[pc]
            if l not in region:
                region[l] = [0, 0]; order.append(l)
            region[l][0] += t - t0
            region[l][1] += 4 * i.passes if i.kind == 'mfma' else 0
        for l in order:
            print(f'   {l:24s} est {region[l][0]:7d} cyc   mfma {region[l][1]:7d}')
        print('   total', t)
```

```python
import sys, struct
import asmlib
from asmlib import Prog, I

OPT = dict(x.split('=') for x in sys.argv[2:] if '=' in x)
PROF = int(OPT.get('prof', 0))
LOG2E = 1.4426950408889634
CSC = LOG2E / 16


def opt(k, d):
    return int(OPT.get(k, d))


def fbits(x):
    return '0x%08x' % struct.unpack('<I', struct.pack('<f', x))[0]


def v(i, n=1):
    return 'v%d' % i if n == 1 else 'v[%d:%d]' % (i, i + n - 1)


def a(i, n=1):
    return 'a%d' % i if n == 1 else 'a[%d:%d]' % (i, i + n - 1)


def s(i, n=1):
    return 's%d' % i if n == 1 else 's[%d:%d]' % (i, i + n - 1)


MF = 'v_mfma_f32_32x32x16_bf16'
MF16 = 'v_mfma_f32_16x16x32_bf16'

WS_PART = 0
WS_Y = 0x1000000
WS_STATS = WS_Y + 0x10000
WS_PROF = 0x3000000
OOB = 0x7ff00000

XA = 131072
XL = 98304
L_WR = XA + 6144
L_ONE = XA + 7168
L_ST = XA + 14336
L_MEX = XA + 18432
L_H = XA + 22528

QO, X0, X1, Z, P0, P1, OV = 0, 32, 48, 64, 80, 88, 96
XR = 32
ACC = 96
MT = 208
vDA, vDB = 224, 228
vK = 232
vA, vB = 238, 239
vTr = 240
vT = 242
vL, vLc, vMx, vSp, vL16, vLane = 246, 247, 248, 249, 250, 251
vTmp = 252
vStamp = 255
vDQ, vDX, nT, D1, D2, D4, vW, vXa, vXs, vWr, vRow, vPf = 0, 4, 8, 12, 16, 20, 24, 26, 28, 29, 30, 31
FB, QP, O7, XB, PF, AG, YR, NEG, PFD = 0, 64, 96, 112, 112, 176, 184, 248, 252
XS_, WA_ = 112, 168
NAGPR = 256
pX, pK, pV, pWQ, pWO, pWR, pG, pU, pD, pOUT, pDBG, pWS = 4, 6, 8, 10, 12, 16, 18, 20, 22, 24, 26, 28
sX, sQ, sK, sV, sWS, sMO, sDBG, sT1, sT2 = 32, 36, 40, 44, 48, 52, 56, 60, 64
sW, sW4k, sKvh, sQt, sOff, sThr, sH, sRg = 68, 69, 70, 71, 72, 73, 74, 75
sTile = 76
sIn, sPub, sSel0, sSel1 = 83, 84, 85, 86
sA, sB, sC, sD_, sCol = 87, 88, 89, 14, 15
sM = 90
sRet = 98
sSt = 100
sPart = 4
sWi = 3
THR = 16.0
TORD = [7, 0, 1, 2, 3, 4, 5, 6]


def Oreg(t):
    return v(OV + 16 * t, 16) if t < 7 else a(O7, 16)


def cost(o):
    t = o.text if isinstance(o, I) else o
    if t.endswith(':'):
        return 0
    if t.startswith('WAITV'):
        return 4
    if t.startswith(asmlib.TRANS):
        return 8
    if t.startswith('ds_write_b128'):
        return opt('cw', 40)
    if t.startswith('ds_write'):
        return 16
    if t.startswith('buffer_store_dwordx4'):
        return opt('cs', 24)
    if t.startswith(('buffer_', 'global_')):
        return opt('cd', 12)
    if t.startswith('v_mfma'):
        return 16
    if t.startswith('s_barrier'):
        return 8
    return 4


class Sched:
    nfill = 0

    def __init__(self, n):
        self.mf = [None] * n
        self.pre = [[] for _ in range(n)]
        self.rd = [[] for _ in range(n)]
        self.val = [[] for _ in range(n)]
        self.post = [[] for _ in range(n)]
        self.c = [0] * n

    def add(self, lst, g, ops, sid=None):
        if sid is None:
            f = sys._getframe(1)
            while f.f_code.co_name in ('at', 'fill', 'add'):
                f = f.f_back
            sid = f.f_lineno
        if not isinstance(ops, (list, tuple)):
            ops = [ops]
        for o in ops:
            if not isinstance(o, I):
                o = I(o)
            o.sid = sid
            lst[g].append(o)
            self.c[g] += cost(o)

    def at(self, g, ops):
        self.add(self.val, g, ops)

    def fill(self, ops, g0, g1, maxper=None):
        grp = [o if isinstance(o, (list, tuple)) else [o] for o in ops]
        cs = [sum(cost(o) for o in x) for x in grp]
        big = 24

        def tryit(L):
            g, pos, c, n = g0, [], self.c[g0], 0
            for x in cs:
                while c + min(x, big) > max(L, min(x, big) + 8 if x >= big else 0) or (maxper and n >= maxper):
                    g += 1
                    if g > g1:
                        return None
                    c, n = self.c[g], 0
                pos.append(g)
                c += x
                n += 1
            return pos
        lo, hi = 0, 4000
        while lo < hi:
            mid = (lo + hi) // 2
            if tryit(mid) is None:
                lo = mid + 1
            else:
                hi = mid
        pos = tryit(lo)
        Sched.nfill += 1
        sid = (sys._getframe(1).f_lineno, Sched.nfill)
        for x, g in zip(grp, pos):
            self.add(self.val, g, x, sid)
        return pos[-1]

    def emit(self, p, g0, g1):
        for g in range(g0, g1):
            p.e(self.mf[g])
            for lst in (self.pre, self.rd, self.val, self.post):
                for o in lst[g]:
                    p.e(o)


def stats_code(sx, sxx, mb, sd, t):
    return [
        f'v_mul_f32 {v(mb)}, {fbits(1/448)}, {v(sx)}',
        f'v_mul_f32 {v(t)}, {fbits(1/448)}, {v(sxx)}',
        f'v_fma_f32 {v(t)}, -{v(mb)}, {v(mb)}, {v(t)}',
        f'v_max_f32 {v(t)}, 0, {v(t)}',
        f'v_cvt_pk_bf16_f32 {v(t)}, {v(mb)}, {v(t)}',
        f'v_lshlrev_b32 {v(mb)}, 16, {v(t)}',
        f'v_and_b32 {v(t)}, 0xffff0000, {v(t)}',
        f'v_add_f32 {v(t)}, {fbits(1e-5)}, {v(t)}',
        f'v_cvt_pk_bf16_f32 {v(t)}, 0, {v(t)}',
        f'v_sqrt_f32 {v(t)}, {v(t)}',
        f'v_cvt_pk_bf16_f32 {v(sd)}, 0, {v(t)}',
    ]


def red64(r, t, op):
    out = []
    for pat in ('quad_perm:[1,0,3,2]', 'quad_perm:[2,3,0,1]', 'row_half_mirror', 'row_mirror'):
        out.append(f'{op}_dpp {v(r)}, {v(r)}, {v(r)} {pat} row_mask:0xf bank_mask:0xf')
    return out + red4g(r, t, op)


def red4g(r, t, op):
    return [f'v_mov_b32 {v(t)}, {v(r)}', f'v_permlane16_swap_b32 {v(r)}, {v(t)}', f'{op} {v(r)}, {v(r)}, {v(t)}',
            f'v_mov_b32 {v(t)}, {v(r)}', f'v_permlane32_swap_b32 {v(r)}, {v(t)}', f'{op} {v(r)}, {v(r)}, {v(t)}']


def top2(k, g1, t, m):
    return ([f'v_mov_b32 {v(g1)}, {v(k)}'] + red64(g1, t, 'v_max_u32') +
            [f'v_cmp_eq_u32_e64 {s(m,2)}, {v(g1)}, {v(k)}', f'v_cndmask_b32_e64 {v(k)}, {v(k)}, 0, {s(m,2)}'] +
            red64(k, t, 'v_max_u32'))


def rbf(r):
    return [f'v_cvt_pk_bf16_f32 {v(r)}, 0, {v(r)}']


def srd(dst, ptr, size):
    return [f's_mov_b32 {s(dst)}, {s(ptr)}', f's_and_b32 {s(dst+1)}, {s(ptr+1)}, 0xffff',
            f's_mov_b32 {s(dst+2)}, {size}', f's_mov_b32 {s(dst+3)}, 0x20000']


def srd_off(dst, ptr, off, size):
    o = []
    if off is not None:
        o.append([f's_add_u32 {s(dst)}, {s(ptr)}, {s(off)}', f's_addc_u32 {s(dst+1)}, {s(ptr+1)}, 0'])
        ptr = dst
    return o + [[f's_sub_u32 {s(dst)}, {s(ptr)}, 3072', f's_subb_u32 {s(dst+1)}, {s(ptr+1)}, 0'],
                f's_and_b32 {s(dst+1)}, {s(dst+1)}, 0xffff',
                f's_mov_b32 {s(dst+2)}, {size}', f's_mov_b32 {s(dst+3)}, 0x20000']


def softmax_ops(X, P):
    grp = []
    for q in range(8):
        t0, t1 = vT + 2 * (q % 2), vT + 2 * (q % 2) + 1
        ex = [f'v_exp_f32 {v(t0)}, {v(X+2*q)}', f'v_exp_f32 {v(t1)}, {v(X+2*q+1)}']
        if q == 0:
            f = [f'v_add_f32 {v(vLc)}, {v(t0)}, {v(t1)}']
        else:
            f = [f'v_add_f32 {v(vLc)}, {v(vLc)}, {v(t0)}', f'v_add_f32 {v(vLc)}, {v(vLc)}, {v(t1)}']
        f.append(f'v_cvt_pk_bf16_f32 {v(P+q)}, {v(t0)}, {v(t1)}')
        grp.append((ex, f))
    out = []
    for q in range(9):
        ex = grp[q][0] if q < 8 else [None, None]
        f = grp[q - 1][1] if q > 0 else []
        h = (len(f) + 1) // 2
        out += [x for x in [ex[0]] + f[:h] + [ex[1]] + f[h:] if x]
    return out


def max_ops(X):
    mx = [f'v_max3_f32 {v(vMx)}, {v(X)}, {v(X+1)}, {v(X+2)}']
    for i in range(3, 15, 2):
        mx.append(f'v_max3_f32 {v(vMx)}, {v(vMx)}, {v(X+i)}, {v(X+i+1)}')
    mx.append(f'v_max_f32 {v(vMx)}, {v(vMx)}, {v(X+15)}')
    return mx


def fix_code(p, label, Xc, Xn, P, first=False):
    p.label(label)
    e = p.e
    e('s_nop 15')
    e('s_nop 7')
    t = vTmp
    for o in max_ops(Xc):
        e(o)
    e(f'v_mov_b32 {v(t)}, {v(vMx)}')
    e(f'v_permlane32_swap_b32 {v(vMx)}, {v(t)}')
    e(f'v_max_f32 {v(vMx)}, {v(vMx)}, {v(t)}')
    if not first:
        e(f'v_max_f32 {v(vMx)}, 0, {v(vMx)}')
        e(f'v_exp_f32 {v(t)}, -{v(vMx)}')
        for r in range(112):
            e(f'v_mul_f32 {v(OV+r)}, {v(OV+r)}, {v(t)}')
        for r in range(16):
            e(f'v_accvgpr_read_b32 {v(t+1)}, {a(O7+r)}')
            e(f'v_mul_f32 {v(t+1)}, {v(t+1)}, {v(t)}')
            e(f'v_accvgpr_write_b32 {a(O7+r)}, {v(t+1)}')
        e(f'v_mul_f32 {v(vL)}, {v(vL)}, {v(t)}')
    for r in range(16):
        e(f'v_sub_f32 {v(Z+r)}, {v(Z+r)}, {v(vMx)}')
        e(f'v_sub_f32 {v(Xc+r)}, {v(Xc+r)}, {v(vMx)}')
        if Xn is not None:
            e(f'v_sub_f32 {v(Xn+r)}, {v(Xn+r)}, {v(vMx)}')
    for o in softmax_ops(Xc, P):
        e(o)
    e('s_nop 3')
    e(f's_setpc_b64 {s(sRet,2)}')


def gen_main():
    p = Prog('main')
    e = p.e
    NS = 60
    S = Sched(16 * NS)
    tail_code = []
    nstamp = [0]
    G = opt('G', 1)
    LG = G.bit_length() - 1
    MOE = not opt('nomoe', 0)
    PFON = opt('pf', 1)

    def stamp_ops(lvl=0):
        if not PROF or (lvl and lvl != opt('plvl', 1)):
            return []
        k = nstamp[0]
        nstamp[0] += 1
        ops = []
        if k:
            ops.append(f'v_writelane_b32 {v(vStamp)}, {s(sSt)}, {k-1}')
        ops.append(f's_mem{"real" if PROF == 2 else ""}time {s(sSt,2)}')
        return ops

    def E(ops):
        for o in ops:
            if isinstance(o, (list, tuple)):
                E(o)
            else:
                e(o)

    def side(name, cond, var, body, clob=()):
        br = I(f's_cbranch_scc1 {name}', taken=lambda k, vr: vr == var)
        br.clob = list(clob)
        tail_code.append(lambda: (p.label(name), body(), e(f's_branch {name}r')))
        return list(cond) + [br, f'{name}r:']

    GORD = [(0, 0), (1, 0), (0, 1), (1, 1)] + [(n, q) for n in range(2, 7) for q in (0, 1)]

    def dma(vd, sr, j):
        return I(f'buffer_load_dwordx4 {v(vd+j)}, {s(sr,4)}, {s(sOff)} offen offset:{1024*j} lds', stream='ring')

    def chunk_ops(d):
        slot = (d % 8) * 16384
        pre = [f's_add_u32 m0, {s(sW4k)}, {slot}']
        if d < 28:
            vd, sr = vDQ, sQ
            pre.append(f's_mov_b32 {s(sOff)}, {(d >> 1) * 32 * 8192 + (d & 1) * 512}')
        elif d < 60:
            t = d - 28
            if t < 2:
                isk, j = True, t
            elif t >= 30:
                isk, j = False, t - 16
            else:
                isk, j = (t % 2 == 1), ((t + 1) // 2 if t % 2 else (t - 2) // 2)
            vd, sr = (vDA, sK) if isk else (vDB, sV)
            pre.append(f's_mov_b32 {s(sOff)}, {j * 16384}')
        else:
            st, hw = (d - 60) >> 1, d & 1
            n, par = GORD[st]
            vd, sr = vDA, sQ
            pre.append(f's_add_u32 {s(sOff)}, {s(sTile+n)}, {(hw ^ par) * 256 * 896 + hw * 64}')
        return [(list(pre) if j == 0 else []) + [dma(vd, sr, j)] for j in range(4)]

    def g4_slots(n):
        b = 4 if n % 2 == 0 else 0
        if n in (2, 3, 6):
            return {(0, 0): b, (0, 1): b + 1, (1, 0): b + 2, (1, 1): b + 3}
        return {(0, 0): b, (0, 1): b + 3, (1, 0): b + 2, (1, 1): b + 1}

    def pair_ops(n, H):
        sl = g4_slots(n)
        out, cur = [], None
        for q, (T, j) in enumerate([(0, 0), (1, 0), (1, 1), (0, 1), (0, 2), (1, 2), (1, 3), (0, 3)]):
            ops = []
            if q == 0:
                ops.append(f's_add_u32 {s(sOff)}, {s(sTile+n)}, {H * 256 * 896}')
            if T != cur:
                ops.append(f's_add_u32 m0, {s(sW4k)}, {sl[(H, T)] * 16384}')
                cur = T
            ops.append(dma(vDB if T else vDA, sQ, j))
            out.append(ops)
        return out

    def waitring(d):
        return I('WAITV', waitv=('ring', lambda k: 4 * (d + 1)))

    def waitv(st, n):
        return I('WAITV', waitv=(st, lambda k: n))

    p.label('main_kernel')
    e('s_cmp_ge_u32 s2, 256')
    e('s_cbranch_scc1 L_end', taken=lambda k, var: False)
    if PROF:
        e('s_memrealtime s[30:31]')
    E(stamp_ops())
    e('s_load_dwordx16 s[4:19], s[0:1], 0')
    e('s_load_dwordx8 s[20:27], s[0:1], 64')
    e('s_load_dwordx2 s[28:29], s[0:1], 96')
    t0, t1, t2 = vTmp, vTmp + 1, vTmp + 2
    l4, c4, f4, l15 = vT, vT + 1, vT + 2, vT + 3
    e(f'v_lshrrev_b32 {v(t0)}, 6, v0')
    e(f'v_and_b32 {v(vLane)}, 63, v0')
    e(f'v_readfirstlane_b32 {s(sW)}, {v(t0)}')
    if G == 1:
        e(f's_and_b32 {s(sKvh)}, s2, 7')
        e(f's_lshr_b32 {s(sQt)}, s2, 3')
    else:
        e(f's_and_b32 {s(sKvh)}, s2, {8//G - 1}')
        e(f's_lshl_b32 {s(sKvh)}, {s(sKvh)}, {LG}')
        e(f's_bfe_u32 {s(sA)}, s2, {3 | (LG << 16)}')
        e(f's_add_u32 {s(sKvh)}, {s(sKvh)}, {s(sA)}')
        e(f's_bfe_u32 {s(sQt)}, s2, {(3 - LG) | (LG << 16)}')
        e(f's_lshl_b32 {s(sQt)}, {s(sQt)}, {5 - LG}')
        e(f's_lshr_b32 {s(sA)}, s2, {3 + LG}')
        e(f's_add_u32 {s(sQt)}, {s(sQt)}, {s(sA)}')
    e(f'v_lshrrev_b32 {v(f4)}, 4, {v(vLane)}')
    e(f'v_and_b32 {v(l15)}, 15, {v(vLane)}')
    e(f'v_lshrrev_b32 {v(l4)}, 2, {v(vLane)}')
    e(f'v_and_b32 {v(c4)}, 3, {v(vLane)}')
    e(f'v_xor_b32 {v(t2)}, {v(c4)}, {v(f4)}')
    e(f'v_mul_u32_u24 {v(t0)}, 896, {v(l4)}')
    e(f'v_lshl_add_u32 {v(t0)}, {v(t2)}, 4, {v(t0)}')
    for j in range(4):
        e(f'v_add_u32 {v(vDX+j)}, {64*j - 1024*j + 3072}, {v(t0)}')
    e(f'v_lshlrev_b32 {v(vL16)}, 4, {v(vLane)}')
    e(f's_lshl_b32 {s(sA)}, {s(sQt)}, 2')
    e(f's_add_u32 {s(sA)}, {s(sA)}, {s(sW)}')
    e(f's_mul_i32 {s(sOff)}, {s(sA)}, {16*896}')
    e(f's_and_b32 {s(sWi)}, {s(sA)}, {128//G - 1}')
    e(f's_lshl_b32 {s(sW4k)}, {s(sW)}, 12')
    e(f's_lshl_b32 {s(sC)}, {s(sW)}, 13')
    e(f's_lshr_b32 {s(sH)}, {s(sW)}, 1')
    e(f's_and_b32 {s(sRg)}, {s(sW)}, 1')
    e(f'v_lshlrev_b32 {v(t1)}, 13, {v(l4)}')
    e(f'v_lshl_add_u32 {v(t1)}, {v(c4)}, 4, {v(t1)}')
    e(f's_lshl_b32 {s(sB)}, {s(sH)}, 17')
    e(f's_lshl_b32 {s(sA)}, {s(sRg)}, 8')
    e(f's_add_u32 {s(sB)}, {s(sB)}, {s(sA)}')
    e(f'v_add_u32 {v(t1)}, {s(sB)}, {v(t1)}')
    for j in range(4):
        e(f'v_add_u32 {v(vDQ+j)}, {64*j - 1024*j + 3072}, {v(t1)}')
    e(f'v_lshlrev_b32 {v(vPf)}, {7 - LG}, {v(vLane)}')
    e(f'v_add_u32 {v(vPf)}, {s(sWi)}, {v(vPf)}')
    e(f'v_lshrrev_b32 {v(t0)}, 3, {v(vPf)}')
    e(f'v_lshlrev_b32 {v(t0)}, 13, {v(t0)}')
    e(f'v_and_b32 {v(t1)}, 7, {v(vPf)}')
    e(f'v_lshl_add_u32 {v(t0)}, {v(t1)}, 7, {v(t0)}')
    e(f'v_lshlrev_b32 {v(vSp)}, 7, {v(vPf)}')
    e(f's_lshl_b32 {s(sB)}, {s(sKvh)}, 10')
    e(f's_mov_b32 m0, {L_WR}')
    E(srd(sT1, pWR, 896))
    E(stamp_ops(2))
    e(I(f'buffer_load_dwordx4 {v(vL16)}, {s(sT1,4)}, 0 offen lds', stream='wr'))
    E(srd_off(sX, pX, None, 2048 * 896 + 3072))
    for i in range(14):
        if i % 4 == 0:
            e(f's_add_u32 m0, {s(sC)}, {XL + (i >> 3) * 32768 + ((i >> 2) & 1) * 4096}')
            if i:
                e(f's_add_u32 {s(sOff)}, {s(sOff)}, 256')
        e(I(f'buffer_load_dwordx4 {v(vDX+i%4)}, {s(sX,4)}, {s(sOff)} offen offset:{1024*(i%4)} lds', stream='x'))
    E(stamp_ops(2))
    E(srd_off(sQ, pWQ, sB, 0))
    e(f's_sub_u32 {s(sQ+2)}, {448*8192+3072}, {s(sB)}')
    E(chunk_ops(0)); E(chunk_ops(1))
    E(stamp_ops(2))

    def pf_wq():
        e(f's_mov_b32 {s(sB)}, {96*8192+3072}')
        e(f'buffer_load_dword {a(PFD)}, {v(t0)}, {s(sQ,4)}, {s(sB)} offen')
        e(f's_getpc_b64 {s(sT1,2)}')
        p.label('L_pc')
        e(f's_and_b32 {s(sT1+1)}, {s(sT1+1)}, 0xffff')
        e(f's_mov_b32 {s(sT1+2)}, L_codeend-L_pc')
        e(f'buffer_load_dword {a(PFD+1)}, {v(vSp)}, {s(sT1,4)}, 0 offen')

    def pf_kv():
        e(f'buffer_load_dword {a(PFD+2)}, {v(vSp)}, {s(sK,4)}, 0 offen offset:3072')
        e(f'buffer_load_dword {a(PFD+3)}, {v(vSp)}, {s(sV,4)}, 0 offen offset:3072')
    if PFON:
        pf_wq()
    e(f's_lshl_b32 {s(sA)}, {s(sKvh)}, 20')
    e(f's_add_u32 {s(sA)}, {s(sA)}, {1536*512}')
    E(srd_off(sK, pK, sA, 512 * 512 + 3072))
    E(srd_off(sV, pV, sA, 512 * 512 + 3072))
    KVP = opt('kvp', 1)
    if PFON and KVP == 0:
        pf_kv()
    E(srd(sWS, pWS, 0x10000000))
    E(srd(sDBG, pDBG, 256))

    def pub0():
        e(f'v_mov_b64 {v(D2,2)}, 0')
        e(f'v_mov_b64 {v(D2+2,2)}, 0')
        e(f's_lshl_b32 {s(sA)}, {s(sQt)}, 12')
        e(f's_lshl_b32 {s(sB)}, {s(sW)}, 10')
        e(f's_add_u32 {s(sA)}, {s(sA)}, {s(sB)}')
        e(f's_add_u32 {s(sA)}, {s(sA)}, {WS_Y}')
        e(f's_cmp_lt_u32 {s(sQt)}, 4')
        e(f's_cselect_b32 {s(sA)}, {s(sA)}, {OOB}')
        e(I(f'buffer_store_dwordx4 {v(D2,4)}, {v(vL16)}, {s(sWS,4)}, {s(sA)} offen sc1', stream='pub'))
    E(side('L_pub0', [f's_cmp_eq_u32 {s(sKvh)}, 7'], 2, pub0))
    E(stamp_ops(2))
    E(chunk_ops(2)); E(chunk_ops(3))
    E(stamp_ops(2))
    for r in range(4):
        e(f'v_mov_b32 {v(nT+r)}, 0x3f803f80')
    e(f'v_add_u32 {v(t0)}, {L_ONE}, {v(vL16)}')
    e(f'ds_write_b128 {v(t0)}, {v(nT,4)}')
    e(f'v_and_b32 {v(t0)}, 1, {v(vLane)}')
    e(f'v_lshlrev_b32 {v(t0)}, 10, {v(t0)}')
    e(f'v_sub_u32 {v(t0)}, {L_ONE}, {v(t0)}')
    e(f'v_lshl_add_u32 {v(vWr)}, {v(f4)}, 4, {v(t0)}')
    e(waitv('wr', 1))
    for i in range(14):
        e(f'ds_read_b128 {a(WA_+4*i,4)}, {v(vWr)} offset:{64*i}')
    setup = []
    hh = t0
    setup += [f'v_lshrrev_b32 {v(hh)}, 5, {v(vLane)}', f'v_lshlrev_b32 {v(vTr)}, 9, {v(hh)}']
    for off, sh, wd in ((2, 6, 2), (4, 5, 1), (0, 4, 1), (1, 3, 1)):
        setup += [f'v_bfe_u32 {v(t1)}, {v(vLane)}, {off}, {wd}', f'v_lshl_add_u32 {v(vTr)}, {v(t1)}, {sh}, {v(vTr)}']
    setup += [f'v_add_u32 {v(vTr+1)}, 0x10000, {v(vTr)}', f's_lshl_b32 {s(sA)}, {s(sH)}, 14',
              f'v_add_u32 {v(vW)}, {s(sA)}, {v(vTr)}', f'v_add_u32 {v(vW+1)}, {s(sA)}, {v(vTr+1)}',
              f'v_lshrrev_b32 {v(t1)}, 2, {v(l15)}', f'v_xor_b32 {v(vXs)}, {v(t1)}, {v(f4)}', f'v_lshlrev_b32 {v(vXs)}, 4, {v(vXs)}',
              f'v_lshl_add_u32 {v(vXs)}, {v(l15)}, 6, {v(vXs)}', f's_add_u32 {s(sA)}, {s(sC)}, {XL}', f'v_add_u32 {v(vXs)}, {s(sA)}, {v(vXs)}',
              f'v_xor_b32 {v(vXa)}, {v(t1)}, {v(hh)}', f'v_lshlrev_b32 {v(vXa)}, 4, {v(vXa)}', f'v_lshl_add_u32 {v(vXa)}, {v(l15)}, 6, {v(vXa)}',
              f'v_and_b32 {v(t1)}, 1, {v(f4)}', f'v_lshl_add_u32 {v(vXa)}, {v(t1)}, 13, {v(vXa)}',
              f's_lshl_b32 {s(sA)}, {s(sRg)}, 14', f's_add_u32 {s(sA)}, {s(sA)}, {XL}', f'v_add_u32 {v(vXa)}, {s(sA)}, {v(vXa)}',
              f'v_xor_b32 {v(vXa+1)}, 32, {v(vXa)}',
              f's_lshl_b32 {s(sA)}, {s(sW)}, 4', f'v_add_u32 {v(vRow)}, {s(sA)}, {v(l15)}']
    for r in range(4):
        setup += [f's_mov_b32 {s(sM+2*r)}, {hex(0x00100001 << r)}', f's_mov_b32 {s(sM+2*r+1)}, {hex(0x10000100 << r)}']
    setup += [f's_lshl_b32 {s(sA)}, {s(sH)}, 13', f's_lshl_b32 {s(sB)}, {s(sRg)}, 8', f's_add_u32 {s(sA)}, {s(sA)}, {s(sB)}',
              f'v_lshlrev_b32 {v(t1)}, 9, {v(l4)}', f'v_add_u32 {v(t1)}, {s(sA)}, {v(t1)}',
              f'v_lshl_add_u32 {v(t2)}, {v(t2)}, 4, {v(t1)}', f'v_lshl_add_u32 {v(t1)}, {v(c4)}, 4, {v(t1)}']
    for j in range(4):
        setup += [f'v_add_u32 {v(vDA+j)}, {64*j - 1024*j + 3072}, {v(t2)}', f'v_add_u32 {v(vDB+j)}, {64*j - 1024*j + 3072}, {v(t1)}']
    setup += [f'v_bfe_u32 {v(t2)}, {v(vLane)}, 2, 1', f'v_bfe_u32 {v(t1)}, {v(vLane)}, 3, 1',
              f'v_lshl_add_u32 {v(t2)}, {v(t2)}, 1, {v(t1)}', f'v_lshl_add_u32 {v(t1)}, {v(t2)}, 2, {v(c4)}',
              f'v_xor_b32 {v(t2)}, {v(t2)}, {v(hh)}',
              f'v_lshlrev_b32 {v(t2)}, 4, {v(t2)}', f'v_lshl_add_u32 {v(t2)}, {v(t1)}, 6, {v(t2)}',
              f'v_bfe_u32 {v(t1)}, {v(vLane)}, 4, 1', f'v_lshl_add_u32 {v(vK)}, {v(t1)}, 13, {v(t2)}',
              f'v_xor_b32 {v(vK+1)}, 32, {v(vK)}']
    setup += [f'v_add_u32 {v(vK+2+i)}, 0x10000, {v(vK+i)}' for i in range(2)]
    setup += [f's_mov_b32 {s(sThr)}, {fbits(65536.0)}',
              f's_mul_i32 {s(sA)}, {s(sRg)}, 14', f's_mul_i32 {s(sB)}, {s(sH)}, 7', f's_add_u32 {s(sA)}, {s(sA)}, {s(sB)}',
              f's_mul_i32 {s(sB)}, {s(sQt)}, 28', f's_add_u32 {s(sA)}, {s(sA)}, {s(sB)}', f's_lshl_b32 {s(sIn)}, {s(sA)}, 14',
              f's_add_u32 {s(sA)}, {s(sKvh)}, 1']
    for n in range(7):
        setup += [f's_cmp_ge_u32 {s(sA)}, 7', f's_cselect_b32 {s(sB)}, 7, 0', f's_sub_u32 {s(sA)}, {s(sA)}, {s(sB)}',
                  f's_lshl_b32 {s(sTile+n)}, {s(sA)}, 7', f's_lshl_b32 {s(sB)}, {s(sA)}, 14', f's_add_u32 {s(sPart+n)}, {s(sB)}, {s(sIn)}',
                  f's_cmp_eq_u32 {s(sKvh)}, 7', f's_cselect_b32 {s(sB)}, 6, {n}', f's_lshl_b32 {s(sB)}, {s(sB)}, 11',
                  f's_add_u32 {s(sPart+n)}, {s(sPart+n)}, {s(sB)}', f's_add_u32 {s(sA)}, {s(sA)}, 1']
    setup += [f's_sub_u32 {s(sIn)}, {s(sPart+6)}, {6*2048}',
              f's_cmp_eq_u32 {s(sKvh)}, 7', f's_cselect_b32 {s(sIn)}, {OOB}, {s(sIn)}', f's_cselect_b32 {s(sPart+6)}, {s(sPart+6)}, {OOB}',
              f's_cselect_b32 {s(sPub)}, {s(sW)}, 1',
              f's_lshl_b32 {s(sCol)}, {s(sH)}, 6', f's_add_u32 {s(sCol)}, {s(sCol)}, {s(sTile+6)}',
              f'v_mov_b32 {v(t1)}, -1'] + [f'v_accvgpr_write_b32 {a(NEG+r)}, {v(t1)}' for r in range(4)]
    setup += srd(sMO, pWS, 0x10000000) + [f's_cmp_eq_u32 {s(sKvh)}, 7', f's_cselect_b32 {s(sMO+2)}, 0, {s(sMO+2)}']
    per = (len(setup) + 13) // 14
    E(setup[:2 * per])
    for i in range(14):
        e(f'{MF16} {v(D4,4)}, {a(WA_+4*i,4)}, {v(nT,4)}, {v(D4,4) if i else 0}')
        E(setup[(2 + i) * per:(3 + i) * per])
    E(stamp_ops())
    later = chunk_ops(4) + chunk_ops(5)

    def xoff(i):
        return (i >> 3) * 32768 + (i & 7) * 1024

    def xs_read(i):
        return f'ds_read_b128 {a(XS_+4*i,4)}, {v(vXs)} offset:{xoff(i)}'

    def xf_read(i, ks):
        return f'ds_read_b128 {v(XR+8*(i%8)+4*ks,4)}, {v(vXa+ks)} offset:{xoff(i)}'

    def st_mf(i):
        return [f'{MF16} {v(D1,4)}, {a(WA_+4*i,4)}, {a(XS_+4*i,4)}, {v(D1,4) if i else 0}',
                f'{MF16} {v(D2,4)}, {a(XS_+4*i,4)}, {a(XS_+4*i,4)}, {v(D2,4) if i else 0}']
    grp = [(0, 4), (4, 8), (8, 12), (12, 14)]
    xfr = [xf_read(i, ks) for i in range(8) for ks in range(2)]
    for q, (i0, i1) in enumerate(grp):
        e(waitv('x', i1))
        for i in range(i0, i1):
            e(xs_read(i))
        if q == 3:
            e('s_barrier')
            E(stamp_ops(2))
        if q:
            for i in range(*grp[q - 1]):
                E(st_mf(i))
                if q < 3 and opt('c45', 0) == 0:
                    E(later.pop(0))
                if q == 3:
                    E(xfr[:2]); xfr = xfr[2:]
    for i in range(12, 14):
        E(st_mf(i))
        E(xfr[:2]); xfr = xfr[2:]
    E(xfr)
    E(stamp_ops())
    e(f'v_cndmask_b32_e64 {v(t1)}, 0, {v(D2)}, {s(sM,2)}')
    for r in range(1, 4):
        e(f'v_cndmask_b32_e64 {v(t1)}, {v(t1)}, {v(D2+r)}, {s(sM+2*r,2)}')
    E(red4g(t1, t2, 'v_add_f32'))
    mb, sd = D1 + 2, D1 + 3
    E(stats_code(D1, t1, mb, sd, t2))
    sa, sb_, kw = D2, D2 + 1, D2 + 2
    e(f'v_rcp_f32 {v(sd)}, {v(sd)}')
    e(f'v_fma_f32 {v(kw)}, -{v(mb)}, {v(D4+1)}, {v(D1+1)}')
    e(f'v_mul_f32 {v(sa)}, {fbits(CSC)}, {v(sd)}')
    e(f'v_lshlrev_b32 {v(t1)}, 4, {v(vRow)}')
    e(f'v_mul_f32_e64 {v(sb_)}, -{v(mb)}, {v(sa)}')
    e(f'v_mul_f32 {v(kw)}, {v(kw)}, {v(sd)}')
    e(f'v_add_u32 {v(t1)}, {L_ST}, {v(t1)}')
    e(f'ds_write_b96 {v(t1)}, {v(sa,3)}')

    def pub1():
        e(f's_lshl_b32 {s(sA)}, {s(sQt)}, 9')
        e(f's_add_u32 {s(sA)}, {s(sA)}, {WS_STATS}')
        e(f'v_lshlrev_b32 {v(t2)}, 3, {v(vRow)}')
        e(I(f'buffer_store_dwordx2 {v(sa,2)}, {v(t2)}, {s(sWS,4)}, {s(sA)} offen sc1', stream='pub'))
    E(side('L_pub1', [f's_cmp_eq_u32 {s(sKvh)}, 7'], 2, pub1))
    E(later)
    if PFON and KVP == 1:
        pf_kv()
    e(f'v_and_b32 {v(t1)}, 31, {v(vLane)}')
    e(f'v_lshlrev_b32 {v(t1)}, 4, {v(t1)}')
    e(f's_lshl_b32 {s(sA)}, {s(sRg)}, 9')
    e(f's_add_u32 {s(sA)}, {s(sA)}, {L_ST}')
    e(f'v_add_u32 {v(t1)}, {s(sA)}, {v(t1)}')
    e(waitring(1))
    e('s_waitcnt lgkmcnt(0)')
    e('s_barrier')
    E(stamp_ops())
    e(f'ds_read_b64 {v(vA,2)}, {v(t1)}')

    def norm_ops(i, ks=None):
        ops = []
        for r in (range(8) if ks is None else range(4 * ks, 4 * ks + 4)):
            x = XR + 8 * (i % 8) + r
            q0, q1 = nT + 2 * (r % 2), nT + 2 * (r % 2) + 1
            ops += [f'v_lshlrev_b32 {v(q0)}, 16, {v(x)}', f'v_and_b32 {v(q1)}, 0xffff0000, {v(x)}',
                    f'v_fma_f32 {v(q0)}, {v(q0)}, {v(vA)}, {v(vB)}', f'v_fma_f32 {v(q1)}, {v(q1)}, {v(vA)}, {v(vB)}',
                    f'v_cvt_pk_bf16_f32 {v(x)}, {v(q0)}, {v(q1)}']
        return ops

    def fbuf(j, half=None):
        b = FB + 4 * (j % 16)
        return a(b, 4) if half is None else a(b + 2 * half, 2)

    def trr(buf, base, off):
        return [f'ds_read_b64_tr_b16 {fbuf(buf,0)}, {v(base)} offset:{off}',
                f'ds_read_b64_tr_b16 {fbuf(buf,1)}, {v(base)} offset:{off+256}']

    def qfrag(j):
        return v(QO + 4 * j, 4) if j < 8 else a(QP + 4 * (j - 8), 4)

    def set_step(t, mfs, reads, rdpos=None):
        g = 16 * t
        for j, (Dd, B, C) in enumerate(mfs):
            also = [fbuf(j + k) for k in range(1, 4)] if j % 4 == 0 else []
            S.mf[g + j] = I(f'{MF} {Dd}, {fbuf(j)}, {B}, {C}', also=also)
            gg = g + (rdpos[j] if rdpos else j - 8)
            if gg < 0:
                E(reads(j))
            else:
                S.add(S.rd, gg, reads(j))

    late = [-8, -7, -6, -5, -4, -3, -2, -1, 0, 0, 1, 2, 3, 3, 4, 5]
    for st in range(14):
        od = [(j >> 3, j & 7) for j in range(16)] if st < 13 else [(j & 1, j >> 1) for j in range(16)]
        slot = (2 * st) % 8

        def rd(j, slot=slot, od=od):
            return trr(j, vW + (slot >> 2), (slot & 3) * 16384 + (od[j][0] * 8 + od[j][1]) * 1024)
        set_step(st, [(v(ACC + 16 * tt, 16), v(XR + 8 * (st % 8) + 4 * ks, 4), v(ACC + 16 * tt, 16) if (st or ks) else '0')
                      for ks, tt in od], rd, rdpos=late)
    E(norm_ops(0, 0))

    def s_step(t, X, C0):
        slot = (t + 14) % 8

        def rd(j):
            return [f'ds_read_b128 {fbuf(j)}, {v(vK + 2*(slot >> 2) + (j & 1))} offset:{(slot & 3) * 16384 + (j >> 1) * 1024}']
        return [(v(X, 16), qfrag(j), v(X, 16) if j else C0) for j in range(16)], rd

    def pv_step(t, P, first=False, order=None):
        slot = (t + 14) % 8
        order = order or [(j // 8, j % 8) for j in range(16)]

        def rd(j):
            return trr(j, vTr + (slot >> 2), (slot & 3) * 16384 + (order[j][0] * 8 + order[j][1]) * 1024)
        return [(Oreg(tl), v(P + 4 * ks, 4), '0' if (first and ks == 0) else Oreg(tl)) for ks, tl in order], rd

    XS, PS = (X0, X1), (P0, P1)
    set_step(14, *s_step(14, X0, '0'))
    set_step(15, *s_step(15, X1, '0'))
    for j in range(14):
        set_step(16 + 2 * j, *pv_step(16 + 2 * j, PS[j % 2], first=(j == 0)))
        set_step(17 + 2 * j, *s_step(17 + 2 * j, XS[j % 2], v(Z, 16)))
    set_step(44, *pv_step(44, P0))
    set_step(45, *pv_step(45, P1, order=[(j % 2, TORD[j // 2]) for j in range(16)]))

    def ofrag(j):
        tl = TORD[j // 2]
        return (QO if tl == 7 else OV + 16 * tl) + 4 * (j % 2)
    vG = vK
    GACC = {}
    accs = [X0, X1, Z, P0]
    for st, (n, par) in enumerate(GORD):
        GACC[(n, par)] = accs[(n % 2) + 2 * par]
    for st, (n, par) in enumerate(GORD):
        if n < 2:
            s0 = (60 + 2 * st) % 8
            s1 = s0 + 1
        else:
            sl = g4_slots(n)
            s0, s1 = sl[(par, 0)], sl[(1 ^ par, 1)]
        half = s0 >> 2
        if s1 == s0 + 1:
            base, so = vG + half, s0 & 3
        elif s1 == s0 + 3:
            base, so = vG + 2 + half, s0 & 3
        else:
            assert s1 == s0 - 1
            base, so = vG + 4 + half, s1 & 3
        A_ = GACC[(n, par)]

        def rd(j, base=base, so=so):
            return trr(j, base, so * 16384 + (2 * TORD[j // 2] + j % 2) * 1024)
        set_step(46 + st, [(v(A_, 16), a(PF + 4 * j, 4) if par else v(ofrag(j), 4), v(A_, 16) if j else '0')
                           for j in range(16)], rd, rdpos=late)

    BG = 8
    free = {6: 0, 7: 0}
    for st in range(14):
        S.add(S.pre, 16 * st + BG, [waitring(2 * st + 3), 's_waitcnt lgkmcnt(0)', 's_barrier'])
        for d in (2 * st + 8, 2 * st + 9):
            free[d] = 16 * st + BG + 1
    FBG = 4
    TMX = opt('tmx', 35)
    for t in range(15, 46, 2):
        S.add(S.pre, 16 * t + FBG, [waitring(t + 16 if t < 45 else 61)] + (['s_waitcnt lgkmcnt(0)'] if t in (TMX, 45) else []) + ['s_barrier'])
        for d in (t + 20, t + 21):
            if d > 35:
                free[d] = 16 * t + FBG + 1
    gBX = 16 * 46 + 1
    S.add(S.pre, gBX, ['s_waitcnt lgkmcnt(0)', 's_barrier'])
    free[67] = gBX + 1
    TCN = opt('tcn', 48)
    for st in range(13):
        g = 16 * (46 + st) + BG
        w = [waitring(63 + 2 * st)] if st < 3 else ([waitring(65 + 2 * st)] if st % 2 else [])
        if 46 + st == TCN:
            w += [waitv('clr', 14)] + ([waitv('y', 4)] if MOE else [])
        if st < 10:
            w += ['s_waitcnt lgkmcnt(0)']
        if st != 10:
            S.add(S.pre, g, w + ['s_barrier'])
        free[68 + 2 * st] = g + 1
    g45, g46 = 16 * 45, 16 * 46
    g = 0
    dpos = {}
    k = 0
    pat = [int(c) for c in OPT.get('dpat', '2')]
    fsp = opt('fsp', 3)
    nodma = set()
    if opt('xq', 1):
        nodma = set(range(g45 + 6, g46 + 1)) | set(range(g46 + BG + 1, g46 + 18))
    d = 6
    while d < 88:
        grp_ = chunk_ops(d) if d < 68 else pair_ops(2 + (d - 68) // 4, ((d - 68) >> 1) & 1)
        for j, ops in enumerate(grp_):
            g = max(g, free[d])
            while g in nodma:
                g += 1
            S.add(S.pre, g, ops)
            dpos[(d, j)] = g
            sp = pat[k % len(pat)] if (d < opt('dfast', 36) or d >= 63) else fsp
            k += 1
            g += sp
        d += 1 if d < 68 else 2
    gLast = g - 2
    if OPT.get('est'):
        print('dma pos', {d: divmod(pp, 16) for (d, j), pp in dpos.items() if j == 0}, 'last', divmod(gLast, 16))
    g13 = 16 * 13
    assert dpos[(27, 3)] < g13 + 2

    S.fill(norm_ops(0, 1), 0, 5)
    for i in range(8, 14):
        S.add(S.rd, 16 * (i - 2) + 6, xf_read(i, 0))
        S.add(S.rd, 16 * (i - 2) + 7, xf_read(i, 1))
    for i in range(1, 14):
        if i < 13:
            S.fill(norm_ops(i, 0), 16 * (i - 1) + 6, 16 * (i - 1) + 13)
            S.fill(norm_ops(i, 1), 16 * (i - 1) + 14, 16 * i + 5)
        else:
            S.fill(norm_ops(i), 16 * (i - 1) + 6, 16 * (i - 1) + 14)

    def pub2():
        kr, kg, kt = vTmp + 1, vTmp, vTmp + 2
        e(f'v_add_u32 {v(kt)}, {L_ST}, {v(vL16)}')
        e(f'ds_read_b32 {v(kr)}, {v(kt)} offset:8')
        e(f's_lshl_b32 {s(sA)}, {s(sQt)}, 6')
        e(f's_sub_u32 {s(sA)}, 0xffff, {s(sA)}')
        e(f'v_sub_u32 {v(kg)}, {s(sA)}, {v(vLane)}')
        E([f'v_cvt_pk_bf16_f32 {v(kr)}, 0, {v(kr)}', f'v_ashrrev_i32 {v(kt)}, 31, {v(kr)}', f'v_or_b32 {v(kt)}, 0x80000000, {v(kt)}',
           f'v_xor_b32 {v(kr)}, {v(kr)}, {v(kt)}', f'v_and_b32 {v(kr)}, 0xffff0000, {v(kr)}', f'v_or_b32 {v(kr)}, {v(kr)}, {v(kg)}'])
        E(top2(kr, kg, kt, sM))
        e(f's_lshl_b32 {s(sA)}, {s(sQt)}, 3')
        e(f'v_lshlrev_b32 {v(kt)}, 20, {v(vLane)}')
        e(f'buffer_store_dwordx2 {v(kg,2)}, {v(kt)}, {s(sDBG,4)}, {s(sA)} offen sc1')
    S.add(S.post, 16 * 2 + BG + 1, side('L_pub2', [f's_cmp_eq_u32 {s(sPub)}, 0'], 2, pub2))

    for tt in range(8):
        src = ACC + 16 * tt
        if tt < 4:
            ops = [f'v_cvt_pk_bf16_f32 {v(QO+8*tt+r)}, {v(src+2*r)}, {v(src+2*r+1)}' for r in range(8)]
            S.fill(ops, g13 + 2 * tt + 3, g13 + 2 * tt + 6)
        else:
            ops = []
            for r in range(9):
                if r < 8:
                    ops.append(f'v_cvt_pk_bf16_f32 {v(src+2*r)}, {v(src+2*r)}, {v(src+2*r+1)}')
                if r:
                    ops.append(f'v_accvgpr_write_b32 {a(QP+8*(tt-4)+r-1)}, {v(src+2*r-2)}')
            S.fill(ops, g13 + max(2 * tt + 3, 13 + 4 * (tt - 4)), g13 + 16 + 4 * (tt - 4))

    zero = [f'v_mov_b64 {v(Z+r,2)}, 0' for r in range(0, 16, 2)] + [f'v_mov_b32 {v(vL)}, 0']
    S.fill(zero, 16 * 14 + 12, 16 * 15 + 1)
    sm = softmax_ops(X0, P0)
    mx = max_ops(X0)
    allo = []
    for n, o in enumerate(sm):
        allo.append(o)
        if n % 4 == 3 and mx:
            allo.append(mx.pop(0))
    allo += mx + [f's_mov_b32 {s(sA)}, {fbits(THR)}', f'v_cmp_lt_f32_e64 vcc, {s(sA)}, |{v(vMx)}|']
    S.fill(allo, 16 * 15 + 2, 16 * 15 + 15)

    def fixcall(t, name):
        br = I(f's_cbranch_vccnz L_st{t}', taken=lambda k, var: var == 1)
        br.clob = [v(vTmp), v(vTmp + 1), v(vMx), s(sRet), s(sRet + 1)] + [v(vT + r) for r in range(4)]
        S.add(S.post, 16 * t + 15, [br, f'L_rt{t}:'])
        tail_code.append(lambda: (p.label(f'L_st{t}'), e(f's_call_b64 {s(sRet,2)}, {name}'), e(f's_branch L_rt{t}')))
    fixcall(15, 'L_fix0')
    tc0 = opt('tclr', 22)
    for q in range(14):
        gq = 16 * tc0 + q * opt('clrsp', 20)
        cand = [g_ for g_ in range(gq, gq + 12) if S.c[g_] <= 4 and S.c[g_ + 1] <= 8]
        S.add(S.post, cand[0] if cand else gq,
              I(f'buffer_store_dwordx4 {a(NEG,4)}, {v(vL16)}, {s(sWS,4)}, {s(sPart+q//2)} offen offset:{1024*(q%2)} sc1', stream='clr'))
    for j in range(15):
        t = 16 + 2 * j
        S.at(16 * t, f'v_add_f32 {v(vL)}, {v(vL)}, {v(vLc)}')
        ops = softmax_ops(XS[(j + 1) % 2], PS[(j + 1) % 2]) + [f'v_cmp_lt_f32 vcc, {s(sThr)}, {v(vLc)}']
        if j < 14:
            S.fill(ops, 16 * t + 2, 16 * t + 30)
            fixcall(t + 1, 'L_fixa' if j % 2 == 0 else 'L_fixb')
        else:
            S.fill(ops, 16 * t + 2, 16 * t + 15)
            fixcall(t, 'L_fixl')

    tPF = opt('tpf', 20)
    ops = [f's_mul_i32 {s(sA)}, {s(sKvh)}, {512*896}'] + srd_off(sQ, pWO, sA, 512 * 896 + 3072)
    S.fill(ops, 16 * 16 + 1, 16 * 16 + 15)
    if PFON:
        S.fill([f'buffer_load_dword {a(PFD)}, {v(vSp)}, {s(sQ,4)}, 0 offen offset:3072'], 16 * (tPF + 1), 16 * (tPF + 1) + 8)

    if MOE:
        m0_, m1_, m2_, m3_ = MT, MT + 1, MT + 2, MT + 3
        XBm, WA, WDv = XB, XB + 16, XB + 32
        ON4 = XB + 40
        z7 = lambda sr: [f's_cmp_eq_u32 {s(sKvh)}, 7', f's_cselect_b32 {s(sr+2)}, 0, {s(sr+2)}']
        ops = srd(sT1, pD, 1792 * 896) + [z7(sT1)] + srd(sT2, pU, 448 * 3584) + [z7(sT2)]
        ops += [f's_lshl_b32 {s(sD_)}, {s(sKvh)}, 5', f's_add_u32 {s(sD_)}, {s(sD_)}, {s(sQt)}']
        if PFON:
            ops += [f's_andn2_b32 {s(sA)}, {s(sD_)}, {32//G - 1}', f's_mul_i32 {s(sB)}, {s(sA)}, {8*896}', f's_lshl_b32 {s(sA)}, {s(sA)}, 4',
                    f'v_min_u32 {v(m0_)}, 13, {v(vLane)}', f'v_lshlrev_b32 {v(m0_)}, {7 - LG}, {v(m0_)}', f'v_add_u32 {v(m0_)}, {s(sWi)}, {v(m0_)}',
                    f'v_lshlrev_b32 {v(m1_)}, 7, {v(m0_)}',
                    f'v_lshrrev_b32 {v(m2_)}, {2 - LG}, {v(m0_)}', f'v_mul_u32_u24 {v(m2_)}, 3584, {v(m2_)}',
                    f'v_and_b32 {v(m0_)}, {4//G - 1}, {v(m0_)}', f'v_lshl_add_u32 {v(m2_)}, {v(m0_)}, 7, {v(m2_)}']
        S.fill(ops, 16 * 17, 16 * tPF - 1)
        ops = []
        if PFON:
            ops += [f'buffer_load_dword {a(PFD+1)}, {v(m1_)}, {s(sT1,4)}, {s(sB)} offen',
                    f'buffer_load_dword {a(PFD+2)}, {v(m2_)}, {s(sT2,4)}, {s(sA)} offen']
        ops += srd(sT1, pG, 448 * 3584) + [z7(sT1)]
        if PFON:
            ops += [f'buffer_load_dword {a(PFD+3)}, {v(m2_)}, {s(sT1,4)}, {s(sA)} offen']
        S.fill(ops, 16 * tPF, 16 * tPF + 15)
        gP = opt('gpoll', 22)
        S.fill([f'v_lshlrev_b32 {v(m1_)}, 2, {v(vLane)}',
                f'buffer_load_dword {v(m0_)}, {v(m1_)}, {s(sDBG,4)}, 0 offen sc1'], 16 * gP, 16 * gP + 3)
        wv, wsa, wsb = MT + 14, sM + 6, sM + 7
        ops = [f'v_mul_u32_u24 {v(wv)}, 3584, {v(vLane)}', f's_lshl_b32 {s(sA)}, {s(sD_)}, 4', f'v_add_u32 {v(wv)}, {s(sA)}, {v(wv)}',
               f's_mul_i32 {s(wsa)}, {s(sW)}, {64*3584}', f's_add_u32 {s(wsb)}, {s(sW)}, 4', f's_min_u32 {s(wsb)}, {s(wsb)}, 6',
               f's_mul_i32 {s(wsb)}, {s(wsb)}, {64*3584}', f's_lshl_b32 {s(sC)}, {s(sW)}, 10']
        S.fill(ops, 16 * gP + 4, 16 * gP + 31)
        dm = []
        for mat, sr in enumerate((sT1, sT2)):
            for q, so in enumerate((wsa, wsb)):
                dm.append([f's_add_u32 m0, {s(sC)}, {XA + mat*8192 + q*4096}',
                           I(f'buffer_load_dwordx4 {v(wv)}, {s(sr,4)}, {s(so)} offen lds', stream='moe')])
        tD = opt('tmd', 24)
        starts = sorted(dpos[(d, 0)] for d in range(30, 60))
        gM0 = 0
        for q in range(4):
            gM0 = min(x for x in starts if x > 16 * tD + q * opt('mdsp', 28))
            S.add(S.post, gM0 - 2, dm[q])
        gC = 16 * (gP + 3)
        S.at(gC, [f'v_cmp_eq_u32_e64 {s(sM,2)}, 0, {v(m0_)}'])
        S.at(gC + 1, [f's_cmp_lg_u64 {s(sM,2)}, 0', I('s_cbranch_scc1 L_spin1', taken=lambda k, var: var == 1), 'L_spin1r:'])

        def spin1():
            p.label('L_spin1')
            e(f's_mov_b32 {s(sA)}, 0')
            p.label('L_spin1l')
            e('s_sleep 2')
            e(f'buffer_load_dword {v(m0_)}, {v(m1_)}, {s(sDBG,4)}, 0 offen sc1')
            e(f's_add_u32 {s(sA)}, {s(sA)}, 1')
            e(f's_cmp_gt_u32 {s(sA)}, 0x10000')
            e('s_cbranch_scc1 L_spin1r', taken=lambda k, var: False)
            e('s_waitcnt vmcnt(0)')
            e(f'v_cmp_eq_u32_e64 {s(sM,2)}, 0, {v(m0_)}')
            e(f's_cmp_lg_u64 {s(sM,2)}, 0')
            e('s_cbranch_scc1 L_spin1l', taken=lambda k, var: k == 0)
            e('s_branch L_spin1r')
        tail_code.append(spin1)
        ops = top2(m0_, m1_, m2_, sM)
        ops += [f'v_readfirstlane_b32 {s(sSel0)}, {v(m1_)}', f'v_readfirstlane_b32 {s(sSel1)}, {v(m0_)}',
                f's_mov_b32 {s(sM)}, 0xaaaaaaaa', f's_mov_b32 {s(sM+1)}, 0xaaaaaaaa',
                f'v_cndmask_b32_e64 {v(m0_)}, {v(m1_)}, {v(m0_)}, {s(sM,2)}',
                f'v_not_b32 {v(m0_)}, {v(m0_)}', f'v_and_b32 {v(m0_)}, 2047, {v(m0_)}',
                f'v_lshlrev_b32 {v(m1_)}, 3, {v(m0_)}', f's_mov_b32 {s(sA)}, {WS_STATS}',
                f'buffer_load_dwordx2 {v(m2_,2)}, {v(m1_)}, {s(sWS,4)}, {s(sA)} offen sc1',
                f'v_mul_u32_u24 {v(m0_)}, 896, {v(m0_)}', f'v_lshrrev_b32 {v(m1_)}, 4, {v(vLane)}',
                f'v_lshl_add_u32 {v(m0_)}, {v(m1_)}, 4, {v(m0_)}',
                f's_lshl_b32 {s(sA)}, {s(sW)}, 7', f's_add_u32 {s(sB)}, {s(sW)}, 4', f's_min_u32 {s(sB)}, {s(sB)}, 6',
                f's_lshl_b32 {s(sB)}, {s(sB)}, 7']
        for q in range(4):
            ops.append(f'buffer_load_dwordx4 {a(XBm+4*q,4)}, {v(m0_)}, {s(sX,4)}, {s(sA if q < 2 else sB)} offen offset:{3072+64*(q%2)}')
        gE = S.fill(ops, gC + 2, gC + 44, maxper=2)
        ops = [f'v_bfe_u32 {v(m0_)}, {v(vLane)}, 1, 1', f'v_lshlrev_b32 {v(m0_)}, 13, {v(m0_)}',
               f'v_lshl_add_u32 {v(m0_)}, {v(m1_)}, 7, {v(m0_)}',
               f'v_bfe_u32 {v(m1_)}, {v(vLane)}, 2, 2', f'v_lshl_add_u32 {v(m0_)}, {v(m1_)}, 4, {v(m0_)}',
               f'v_and_b32 {v(m1_)}, 1, {v(vLane)}', f'v_lshl_add_u32 {v(m0_)}, {v(m1_)}, 3, {v(m0_)}',
               f's_lshl_b32 {s(sA)}, {s(sW)}, 10', f's_add_u32 {s(sA)}, {s(sA)}, {XA}', f'v_add_u32 {v(m0_)}, {s(sA)}, {v(m0_)}',
               f'v_mov_b32 {v(m1_)}, 0x3f803f80'] + [f'v_accvgpr_write_b32 {a(ON4+r)}, {v(m1_)}' for r in range(4)]
        gE = S.fill(ops, gE + 1, gE + 20)
        wdv = MT + 15
        ops = srd(sT1, pD, 1792 * 896) + [z7(sT1)]
        ops += [f'v_min_u32 {v(wdv)}, 55, {v(vLane)}', f'v_lshlrev_b32 {v(wdv)}, 2, {v(wdv)}',
                f's_mul_i32 {s(sA)}, {s(sD_)}, {8*896}', f's_mul_i32 {s(sB)}, {s(sW)}, 224', f's_add_u32 {s(sA)}, {s(sA)}, {s(sB)}',
                f's_add_u32 {s(sB)}, {s(sA)}, {4*896}']
        for f in range(8):
            ops.append(f'buffer_load_dword {a(WDv+f)}, {v(wdv)}, {s(sT1,4)}, {s(sA if f < 4 else sB)} offen offset:{896*(f%4)}')
        gT = 16 * (TMX - 2) - 4
        gE = S.fill(ops, max(gE, gM0) + 1, gT - 1)
        ops = [waitv('moe', 4)]
        for q in range(4):
            o = (q >> 1) * 4096 + (q & 1) * 512
            ops += [f'ds_read_b64_tr_b16 {a(WA+4*q,2)}, {v(m0_)} offset:{o}', f'ds_read_b64_tr_b16 {a(WA+4*q+2,2)}, {v(m0_)} offset:{o+64}']
        gE = S.fill(ops, gT, gT + 8)
        DX, DC = MT + 4, MT + 8
        gm = gE + 3
        S.add(S.post, gm, f'{MF16} {v(DC,4)}, {a(WA,4)}, {a(ON4,4)}, 0')
        S.add(S.post, gm + 2, f'{MF16} {v(DC,4)}, {a(WA+4,4)}, {a(ON4,4)}, {v(DC,4)}')
        S.add(S.post, gm + 4, f'{MF16} {v(DX,4)}, {a(WA,4)}, {a(XBm,4)}, 0')
        S.add(S.post, gm + 6, I(f'{MF16} {v(DX,4)}, {a(WA+4,4)}, {a(XBm+4,4)}, {v(DX,4)}', also=[a(XBm + 8, 8), a(WA + 8, 8)]))
        S.add(S.post, gm + 8, [f's_cmp_eq_u32 {s(sW)}, 3', I('s_cbranch_scc1 L_w3a', taken=lambda k, var: var == 1),
                               f'{MF16} {v(DC,4)}, {a(WA+8,4)}, {a(ON4,4)}, {v(DC,4)}',
                               f'{MF16} {v(DX,4)}, {a(WA+8,4)}, {a(XBm+8,4)}, {v(DX,4)}', 'L_w3a:'])
        S.add(S.post, gm + 10, [f's_cmp_eq_u32 {s(sW)}, 3', I('s_cbranch_scc1 L_w3b', taken=lambda k, var: var == 1),
                                f'{MF16} {v(DC,4)}, {a(WA+12,4)}, {a(ON4,4)}, {v(DC,4)}',
                                f'{MF16} {v(DX,4)}, {a(WA+12,4)}, {a(XBm+12,4)}, {v(DX,4)}', 'L_w3b:'])
        ops = [f'v_mul_f32 {v(DX+r)}, {v(DX+r)}, {v(m2_)}' for r in range(4)]
        ops += [f'v_fmac_f32 {v(DX+r)}, {v(DC+r)}, {v(m3_)}' for r in range(4)]
        ops += [f's_lshl_b32 {s(sA)}, {s(sW)}, 10', f's_add_u32 {s(sA)}, {s(sA)}, {L_MEX}', f'v_add_u32 {v(m0_)}, {s(sA)}, {v(vL16)}',
                f'ds_write_b128 {v(m0_)}, {v(DX,4)}']
        gE = S.fill(ops, gm + 12, 16 * TMX + FBG - 2)
        ops = [f'v_bfe_u32 {v(m0_)}, {v(vLane)}, 2, 1', f'v_lshlrev_b32 {v(m0_)}, 8, {v(m0_)}',
               f'v_bfe_u32 {v(m1_)}, {v(vLane)}, 3, 1', f'v_lshl_add_u32 {v(m0_)}, {v(m1_)}, 4, {v(m0_)}',
               f'v_and_b32 {v(m1_)}, 3, {v(vLane)}', f'v_lshl_add_u32 {v(m0_)}, {v(m1_)}, 2, {v(m0_)}',
               f'v_add_u32 {v(m0_)}, {L_MEX}, {v(m0_)}']
        R = MT + 4
        ops += [f'ds_read2st64_b32 {v(R+2*w_,2)}, {v(m0_)} offset0:{4*w_} offset1:{4*w_+2}' for w_ in range(4)]
        ops += [f's_lshl_b32 {s(sA)}, {s(sW)}, 6', f's_add_u32 {s(sA)}, {s(sA)}, {L_H}',
                f'v_and_b32 {v(m1_)}, 15, {v(vLane)}', f'v_lshlrev_b32 {v(m1_)}, 2, {v(m1_)}', f'v_add_u32 {v(m1_)}, {s(sA)}, {v(m1_)}',
                f'v_mov_b32 {v(m2_)}, {s(sA)}']
        for b in (R, R + 1):
            ops += [f'v_add_f32 {v(b)}, {v(b)}, {v(b+2)}', f'v_add_f32 {v(b+4)}, {v(b+4)}, {v(b+6)}', f'v_add_f32 {v(b)}, {v(b)}, {v(b+4)}',
                    f'v_mul_f32 {v(b)}, {fbits(1/CSC)}, {v(b)}']
        ops += [f'v_cvt_pk_bf16_f32 {v(R+1)}, {v(R)}, {v(R+1)}', f'v_lshlrev_b32 {v(R)}, 16, {v(R+1)}', f'v_and_b32 {v(R+1)}, 0xffff0000, {v(R+1)}',
                f'v_mul_f32 {v(R+2)}, {fbits(-LOG2E)}, {v(R)}', f'v_exp_f32 {v(R+2)}, {v(R+2)}', f'v_add_f32 {v(R+2)}, 1.0, {v(R+2)}',
                f'v_rcp_f32 {v(R+2)}, {v(R+2)}', f'v_mul_f32 {v(R)}, {v(R)}, {v(R+2)}'] + rbf(R) + [f'v_mul_f32 {v(R)}, {v(R)}, {v(R+1)}'] + rbf(R)
        ops += [f'ds_write_b32 {v(m1_)}, {v(R)}']
        H0, H1, Y = MT + 4, MT + 8, MT + 12
        for hf in range(2):
            ops += [f'ds_read_b128 {v(H0,4)}, {v(m2_)} offset:{16*hf}', f'ds_read_b128 {v(H1,4)}, {v(m2_)} offset:{32+16*hf}']
            for f in range(4):
                ops += [f'v_accvgpr_read_b32 {v(m1_)}, {a(WDv+4*hf+f)}',
                        f'v_lshlrev_b32 {v(m0_)}, 16, {v(m1_)}', f'v_and_b32 {v(m1_)}, 0xffff0000, {v(m1_)}']
                op = 'v_mul_f32' if (hf == 0 and f == 0) else 'v_fmac_f32'
                ops += [f'{op} {v(Y)}, {v(m0_)}, {v(H0+f)}', f'{op} {v(Y+1)}, {v(m1_)}, {v(H0+f)}',
                        f'{op} {v(Y+2)}, {v(m0_)}, {v(H1+f)}', f'{op} {v(Y+3)}, {v(m1_)}, {v(H1+f)}']
        ops += [f'v_lshlrev_b32 {v(m0_)}, 2, {v(vLane)}', f'v_cmp_lt_u32_e64 {s(sM,2)}, 55, {v(vLane)}', f'v_mov_b32 {v(m1_)}, {OOB}',
                f'v_cndmask_b32_e64 {v(m0_)}, {v(m0_)}, {v(m1_)}, {s(sM,2)}',
                f's_mul_i32 {s(sA)}, {s(sW)}, 224', f's_and_b32 {s(sB)}, {s(sQt)}, 3', f's_lshl_b32 {s(sB)}, {s(sB)}, 12',
                f's_add_u32 {s(sA)}, {s(sA)}, {s(sB)}', f's_add_u32 {s(sA)}, {s(sA)}, {WS_Y}']
        for q in range(4):
            ops.append(I(f'buffer_atomic_add_f32 {v(Y+q)}, {v(m0_)}, {s(sMO,4)}, {s(sA)} offen offset:{896*q} sc1', stream='y'))
        gE = S.fill(ops, 16 * TMX + FBG + 1, 16 * opt('tye', 43) - 1)
    else:
        pass

    ops = [f'v_lshrrev_b32 {v(t0)}, 2, {v(vLane)}', f'v_mul_u32_u24 {v(t0)}, 896, {v(t0)}', f'v_and_b32 {v(t1)}, 3, {v(vLane)}',
           f'v_lshl_add_u32 {v(t0)}, {v(t1)}, 4, {v(t0)}', f's_mul_i32 {s(sC)}, {s(sW)}, {64*896}', f'v_add_u32 {v(t0)}, {s(sC)}, {v(t0)}']
    ops += [f'v_add_u32 {v(vDA+j)}, {(14336-1024)*j + 3072}, {v(t0)}' for j in range(4)]
    ga, gb = dpos[(57, 3)] + 1, dpos[(60, 0)] - 1
    ga = max(ga, gb - 8)
    if ga // 16 != gb // 16:
        gb = (ga // 16) * 16 + 14
        ga = max(dpos[(57, 3)] + 1, gb - 8)
    S.fill(ops, ga, gb)
    S.fill([f'v_add_u32 {v(vDB+j)}, 64, {v(vDA+j)}' for j in range(4)], 16 * 42, 16 * 43 + 15)

    vRl, vRo, vXw, vXp = vL, vLc, vMx, vT
    ops = [f's_lshl_b32 {s(sA)}, {s(sH)}, 14', f'v_add_u32 {v(vG)}, {s(sA)}, {v(vTr)}', f'v_add_u32 {v(vG+1)}, {s(sA)}, {v(vTr+1)}']
    S.fill(ops, 16 * 43 + 9, 16 * 43 + 15)
    ops = [f's_mul_i32 {s(sA)}, {s(sH)}, 49152', f'v_add_u32 {v(vG+2)}, {s(sA)}, {v(vTr)}', f'v_add_u32 {v(vG+3)}, {s(sA)}, {v(vTr+1)}',
           f'v_xor_b32 {v(vG+4)}, 0x4000, {v(vG)}', f'v_xor_b32 {v(vG+5)}, 0x4000, {v(vG+1)}']
    S.fill(ops, 16 * 47 + 2, 16 * 48 + 15)
    S.at(g45, [f'v_add_f32 {v(vL)}, {v(vL)}, {v(vLc)}', f's_lshl_b32 {s(sA)}, {s(sW)}, 13', f's_add_u32 {s(sA)}, {s(sA)}, {XA}',
               f'v_mov_b32 {v(vLc)}, {v(vL)}'])
    S.at(g45 + 1, [f'v_add_u32 {v(vXw)}, {s(sA)}, {v(vL16)}', f'v_permlane32_swap_b32 {v(vL)}, {v(vLc)}',
                   f'v_xor_b32 {v(vXp)}, 0x4000, {v(vXw)}', f'v_add_f32 {v(vL)}, {v(vL)}, {v(vLc)}'])
    S.at(g45 + 2, [f'v_rcp_f32 {v(vRl)}, {v(vL)}', 's_nop 0', f'ds_write_b32 {v(vXp)}, {v(vRl)} offset:7168'])
    S.add(S.rd, g45 + FBG + 1, f'ds_read_b32 {v(vRo)}, {v(vXw)} offset:7168')
    for c in range(8):
        tl = TORD[c]
        ops = []
        for gq in range(2):
            if tl == 7:
                src = QO + 8
                ops += [f'v_accvgpr_read_b32 {v(src+r)}, {a(O7+8*gq+r)}' for r in range(8)]
            else:
                src = OV + 16 * tl + 8 * gq
            dst = ofrag(2 * c + gq)
            ops += [f'v_cvt_pk_bf16_f32 {v(dst+r)}, {v(src+2*r)}, {v(src+2*r+1)}' for r in range(4)]
            if c < 4:
                ops.append(f'ds_write_b128 {v(vXw)}, {v(dst,4)} offset:{(2*c+gq)*1024}')
        lo = [3, 8, 10, 13, 16, 18, 20, 22][c]
        hi = [8, 10, 13, 15, 19, 21, 23, 25][c]
        S.fill(ops, g45 + lo, g45 + hi)
    for i in range(8):
        S.add(S.rd, gBX + 1 + i // 2, f'ds_read_b128 {a(PF+4*i,4)}, {v(vXp)} offset:{i*1024}')
        S.add(S.post, g46 + BG + 2 + i, f'ds_write_b128 {v(vXw)}, {v(ofrag(8+i),4)} offset:{i*1024}')
        S.add(S.rd, g46 + 16 + BG + i, f'ds_read_b128 {a(PF+32+4*i,4)}, {v(vXp)} offset:{i*1024}')

    EP = MT
    done = {key: 46 + st for st, key in enumerate(GORD)}

    def epi_math(n):
        A_, B_ = GACC[(n, 0)], GACC[(n, 1)]
        return ([f'v_mul_f32 {v(A_+r)}, {v(A_+r)}, {v(vRl)}' for r in range(16)],
                [f'v_fmac_f32 {v(A_+r)}, {v(B_+r)}, {v(vRo)}' for r in range(16)])

    def epi_cvt(n):
        A_ = GACC[(n, 0)]
        _, fm = epi_math(n)
        ops = []
        for gq in range(2):
            ops += fm[8 * gq:8 * gq + 8]
            ops += [f'v_cvt_pk_bf16_f32 {v(EP+4*gq+r)}, {v(A_+8*gq+2*r)}, {v(A_+8*gq+2*r+1)}' for r in range(4)]
        return ops

    def epi_st(n):
        return [I(f'buffer_store_dwordx4 {v(EP+4*gq,4)}, {v(vL16)}, {s(sWS,4)}, {s(sPart+n)} offen offset:{1024*gq} sc1', stream='part')
                for gq in range(2)]
    for n in range(7):
        ta, tb = done[(n, 0)], done[(n, 1)]
        mu, _ = epi_math(n)
        S.fill(mu, 16 * (ta + 1) + 2, 16 * (ta + 1) + 15)
        if n < 6:
            cv, stv = epi_cvt(n), epi_st(n)
            gq = 16 * (tb + 1)
            if n == 5:
                S.fill(cv[:12] + stv[:1] + cv[12:] + stv[1:], gq + 2, gq + 9)
            else:
                S.add(S.post, gq + opt('gs0', 11), stv[0])
                S.add(S.post, gq + opt('gs1', 14), stv[1])
                S.fill(cv, gq + 2, gq + opt('gs0', 11) - 1)
    u0, u1 = MT + 8, MT + 9
    gq = 16 * TCN + BG + 1
    ops = [f'v_lshlrev_b32 {v(u0)}, 28, {v(vLane)}', f'v_lshl_or_b32 {v(u0)}, {v(vLane)}, 24, {v(u0)}',
           f'v_and_b32 {v(u0)}, 0x70000000, {v(u0)}', f'v_bfe_u32 {v(u1)}, {v(vLane)}, 3, 1', f'v_lshl_or_b32 {v(u0)}, {v(u1)}, 28, {v(u0)}',
           f'v_mov_b32 {v(u1)}, 1',
           f's_and_b32 {s(sA)}, {s(sQt)}, 3', f's_lshl_b32 {s(sA)}, {s(sA)}, 12', f's_add_u32 {s(sA)}, {s(sA)}, {WS_Y+3584}',
           [f's_cmp_eq_u32 {s(sW)}, 0', f's_cselect_b32 {s(sA)}, {s(sA)}, {OOB}']]
    S.fill(ops, gq - 14, gq - 2)
    S.at(gq, f'buffer_atomic_add {v(u1)}, {v(u0)}, {s(sWS,4)}, {s(sA)} offen sc1')

    GT = MT + 8
    q0, q1, q2, q3 = GT + 2, GT + 3, GT + 4, GT + 5
    ops = [f'v_and_b32 {v(q0)}, 31, {v(vLane)}', f'v_lshrrev_b32 {v(q1)}, 5, {v(vLane)}', f'v_lshlrev_b32 {v(q1)}, 2, {v(q1)}',
           f'v_sub_u32 {v(q0)}, {v(q0)}, {v(q1)}', f'v_mov_b32 {v(q2)}, 0x3f80', f'v_mov_b32 {v(q3)}, 0x3f800000']
    for gq_ in range(2):
        for r in range(4):
            m = 16 * gq_ + 8 * (r // 2) + 2 * (r % 2)
            ops += [f'v_cmp_eq_u32_e64 {s(sM+4,2)}, {m}, {v(q0)}', f'v_cmp_eq_u32_e64 {s(sM+2,2)}, {m+1}, {v(q0)}',
                    f'v_cndmask_b32_e64 {v(q1)}, 0, {v(q2)}, {s(sM+4,2)}', f'v_cndmask_b32_e64 {v(q1)}, {v(q1)}, {v(q3)}, {s(sM+2,2)}',
                    f'v_accvgpr_write_b32 {a(AG+4*gq_+r)}, {v(q1)}']
    selops = ops
    GX = QO + 8
    go = vTmp
    ops = [f'v_and_b32 {v(go)}, 31, {v(vLane)}', f's_lshl_b32 {s(sC)}, {s(sQt)}, 1', f's_add_u32 {s(sC)}, {s(sC)}, {s(sRg)}',
           f's_lshl_b32 {s(sB)}, {s(sC)}, 5', f'v_add_u32 {v(go)}, {s(sB)}, {v(go)}',
           f'v_lshrrev_b32 {v(go+1)}, 5, {v(vLane)}', f'v_lshlrev_b32 {v(go+1)}, 4, {v(go+1)}',
           f'v_mul_u32_u24 {v(go+2)}, 896, {v(go)}', f'v_add_u32 {v(go+2)}, {v(go+2)}, {v(go+1)}',
           f'v_and_b32 {v(GT)}, 3, {v(vLane)}', f'v_lshlrev_b32 {v(GT)}, 12, {v(GT)}',
           [f's_cmp_eq_u32 {s(sW)}, 0', f's_cselect_b32 {s(sM+7)}, {WS_Y+3584}, {s(sThr)}', f's_cselect_b32 {s(sM+6)}, 64, 0']]
    if MOE:
        ops += [f's_not_b32 {s(sA)}, {s(sSel0)}', f's_bfe_u32 {s(sA)}, {s(sA)}, {5 | (6 << 16)}', f's_not_b32 {s(sB)}, {s(sSel1)}',
                f's_bfe_u32 {s(sB)}, {s(sB)}, {5 | (6 << 16)}',
                [f's_cmp_eq_u32 {s(sA)}, {s(sC)}', f's_cselect_b32 {s(sD_)}, 1, 0'],
                [f's_cmp_eq_u32 {s(sB)}, {s(sC)}', f's_cselect_b32 {s(sD_)}, 1, {s(sD_)}'],
                [f's_cmp_eq_u32 {s(sKvh)}, 7', f's_cselect_b32 {s(sD_)}, 0, {s(sD_)}']]
    S.fill(ops, 16 * 51, 16 * 55 + 15)
    S.fill(selops, 16 * 57, 16 * 59 + 15, maxper=2)
    ops = [f'buffer_load_dword {v(GT+1)}, {v(GT)}, {s(sWS,4)}, {s(sM+7)} offen sc1',
           f'buffer_load_dwordx4 {v(GX,4)}, {v(go+2)}, {s(sX,4)}, {s(sCol)} offen offset:3072',
           f'buffer_load_dwordx4 {v(GX+4,4)}, {v(go+2)}, {s(sX,4)}, {s(sCol)} offen offset:{3072+32}']
    S.fill(ops, gLast + 1, gLast + 6)
    g58 = 16 * 58
    S.at(g58 + BG - 2, [f'v_cmp_ne_u32_e64 {s(sM,2)}, {s(sM+6)}, {v(GT+1)}'])
    S.at(g58 + BG - 1, [f's_cmp_lg_u64 {s(sM,2)}, 0', I('s_cbranch_scc1 L_spin2', taken=lambda k, var: var == 1), 'L_spin2r:'])

    def spin2():
        p.label('L_spin2')
        e(f's_mov_b32 {s(sA)}, 0')
        p.label('L_spin2l')
        e('s_sleep 2')
        e(f'buffer_load_dword {v(GT+1)}, {v(GT)}, {s(sWS,4)}, {s(sM+7)} offen sc1')
        e(f's_add_u32 {s(sA)}, {s(sA)}, 1')
        e(f's_cmp_gt_u32 {s(sA)}, 0x10000')
        e('s_cbranch_scc1 L_spin2r', taken=lambda k, var: False)
        e('s_waitcnt vmcnt(0)')
        e(f'v_cmp_ne_u32_e64 {s(sM,2)}, {s(sM+6)}, {v(GT+1)}')
        e(f's_cmp_lg_u64 {s(sM,2)}, 0')
        e('s_cbranch_scc1 L_spin2l', taken=lambda k, var: k == 0)
        e('s_branch L_spin2r')
    tail_code.append(spin2)

    def PT(q):
        return OV + 16 * (q // 2) + 8 + 4 * (q % 2)

    def pload(q):
        return [f's_add_u32 {s(sA)}, {s(sIn)}, {(q // 4) * 4096}',
                f'buffer_load_dwordx4 {v(PT(q),4)}, {v(vL16)}, {s(sWS,4)}, {s(sA)} offen offset:{1024*(q%4)} sc1']
    NE = opt('ne', 8)
    yv, sg = GT + 6, GT + 7
    if MOE:
        def ysel1():
            E([f's_not_b32 {s(sA)}, {s(sSel0)}', f's_and_b32 {s(sA)}, {s(sA)}, 2047', f'v_cmp_eq_u32_e64 {s(sM,2)}, {s(sA)}, {v(go)}',
               f's_not_b32 {s(sA)}, {s(sSel1)}', f's_and_b32 {s(sA)}, {s(sA)}, 2047', f'v_cmp_eq_u32_e64 {s(sM+6,2)}, {s(sA)}, {v(go)}',
               f'v_mov_b32 {v(yv)}, {OOB}', f'v_add_u32 {v(sg)}, 1792, {v(go+1)}',
               f'v_cndmask_b32_e64 {v(yv)}, {v(yv)}, {v(go+1)}, {s(sM,2)}',
               f'v_cndmask_b32_e64 {v(yv)}, {v(yv)}, {v(sg)}, {s(sM+6,2)}'])
            for rep in range(4):
                e(f's_add_u32 {s(sA)}, {s(sCol)}, {WS_Y + rep * 4096}')
                for gq_ in range(2):
                    for par in range(2):
                        e(f'buffer_load_dwordx4 {a(YR+16*rep+8*gq_+4*par,4)}, {v(yv)}, {s(sWS,4)}, {s(sA)} offen offset:{32*gq_+896*par} sc1')
            E([f'v_mov_b32 {v(sg)}, {s(sSel1)}', f'v_mov_b32 {v(GT)}, {s(sSel0)}',
               f'v_cndmask_b32_e64 {v(sg)}, {v(sg)}, {v(GT)}, {s(sM,2)}',
               f'v_ashrrev_i32 {v(GT)}, 31, {v(sg)}', f'v_not_b32 {v(GT)}, {v(GT)}', f'v_or_b32 {v(GT)}, 0x80000000, {v(GT)}',
               f'v_xor_b32 {v(sg)}, {v(sg)}, {v(GT)}', f'v_and_b32 {v(sg)}, 0xffff0000, {v(sg)}',
               f'v_mul_f32 {v(sg)}, {fbits(-LOG2E)}, {v(sg)}', f'v_exp_f32 {v(sg)}, {v(sg)}', f'v_add_f32 {v(sg)}, 1.0, {v(sg)}',
               f'v_rcp_f32 {v(sg)}, {v(sg)}'] + rbf(sg))
        S.add(S.post, g58 + BG + 1, side('L_ys1', [f's_cmp_eq_u32 {s(sD_)}, 1'], 1, ysel1,
                                         clob=[s(sA), s(sM), s(sM + 1), s(sM + 6), s(sM + 7), v(GT), v(yv), v(sg)]))
    S.fill([pload(q) for q in range(NE)], g58 + BG + 3, 16 * 59 + 12)

    if PROF:
        pl = opt('plvl', 1)
        for t in {1: (14, 16, 30, 44, 46, 53), 2: (4, 14)}.get(pl, ()):
            S.add(S.pre, 16 * t, stamp_ops())
        if pl >= 3:
            t0_ = opt('pt0', 0)
            for t in range(t0_, t0_ + 9):
                so_ = stamp_ops()
                S.add(S.post, 16 * t + 5, so_[0])
                S.add(S.post, 16 * t + 6, so_[1])
    labels = {0: 'L_g1', 14: 'L_s0', 16: 'L_fl', 44: 'L_pv14', 46: 'L_g4'}
    for t in range(NS):
        if t in labels:
            p.label(labels[t])
        S.emit(p, 16 * t, 16 * t + 16)
    if OPT.get('est'):
        for t in range(NS):
            print(t, S.c[16 * t:16 * t + 16], sum(max(0, c - 24) for c in S.c[16 * t:16 * t + 16]))

    p.label('L_tail')
    E(stamp_ops(1))
    e(f's_cmp_eq_u32 {s(sKvh)}, 7')
    e('s_cbranch_scc1 L_tail7', taken=lambda k, var: var == 2)
    A_ = GACC[(6, 0)]
    for q in range(NE, 14):
        E(pload(q) if q % 4 == 0 or q == NE else pload(q)[1:])
    XF, BF = X1, P0
    c1, c2 = GT + 2, GT + 3
    e(f'v_mul_f32 {v(c1)}, {fbits(1/CSC)}, {v(vA)}')
    e(f'v_mul_f32 {v(c2)}, {fbits(1/CSC)}, {v(vB)}')
    for r in range(8):
        E([f'v_lshlrev_b32 {v(XF+2*r)}, 16, {v(GX+r)}', f'v_and_b32 {v(XF+2*r+1)}, 0xffff0000, {v(GX+r)}',
           f'v_fma_f32 {v(BF+2*r)}, {v(XF+2*r)}, {v(c1)}, {v(c2)}', f'v_fma_f32 {v(BF+2*r+1)}, {v(XF+2*r+1)}, {v(c1)}, {v(c2)}'])
    E(epi_math(6)[1])
    if MOE:
        def ysel2():
            for i in range(16):
                gq_, par, rr = i >> 3, (i >> 2) & 1, i & 3
                w = [GT + 2, GT + 3, GT + 4, GT + 5]
                for rep in range(4):
                    e(f'v_accvgpr_read_b32 {v(w[rep])}, {a(YR+16*rep+i)}')
                e(f'v_add_f32 {v(w[0])}, {v(w[0])}, {v(w[1])}')
                e(f'v_add_f32 {v(w[2])}, {v(w[2])}, {v(w[3])}')
                e(f'v_add_f32 {v(w[0])}, {v(w[0])}, {v(w[2])}')
                e(f'v_fmac_f32 {v(BF+8*gq_+2*rr+par)}, {v(w[0])}, {v(sg)}')
        E(side('L_ys2', [f's_cmp_eq_u32 {s(sD_)}, 1'], 1, ysel2))

    def chk(q0_, q1_):
        rs = [PT(q) for q in range(q0_, q1_)]
        ops = [f'v_max_u32 {v(GT)}, {v(rs[0])}, {v(rs[1])}']
        for i in range(2, len(rs), 2):
            ops.append(f'v_max3_u32 {v(GT)}, {v(GT)}, {v(rs[i])}, {v(rs[i+1])}')
        return ops + [f'v_cmp_eq_u32 vcc, -1, {v(GT)}']

    def respin(name, q0_, q1_):
        def body():
            p.label(name)
            e(f's_mov_b32 {s(sB)}, 0')
            p.label(name + 'l')
            for q in range(q0_, q1_):
                E(pload(q) if q % 4 == 0 or q == q0_ else pload(q)[1:])
            e(f's_add_u32 {s(sB)}, {s(sB)}, 1')
            e(f's_cmp_gt_u32 {s(sB)}, 0x8000')
            e(f's_cbranch_scc1 {name}r', taken=lambda k, var: False)
            E(chk(q0_, q1_))
            e(f's_cbranch_vccnz {name}l', taken=lambda k, var: k == 0)
            e(f's_branch {name}r')
        tail_code.insert(0, body)
        e(f's_cbranch_vccnz {name}', taken=lambda k, var: var == 1)
        p.label(name + 'r')
    E(srd(sT1, pOUT, 2048 * 896))
    E(chk(0, NE))
    respin('L_re', 0, NE)
    gate = []
    TM = QO + 16
    for r in range(16):
        t_ = TM + r % 8
        gate.append([f'v_mul_f32 {v(t_)}, {fbits(-LOG2E)}, {v(BF+r)}', f'v_exp_f32 {v(t_)}, {v(t_)}', f'v_add_f32 {v(t_)}, 1.0, {v(t_)}',
                     f'v_rcp_f32 {v(t_)}, {v(t_)}', f'v_mul_f32 {v(BF+r)}, {v(BF+r)}, {v(t_)}'])
    gl = []
    for b in range(0, 16, 4):
        for k_ in range(5):
            gl += [gate[b + i][k_] for i in range(4)]
    per = (len(gl) + NE - 1) // NE
    for q in range(NE):
        e(f'{MF} {v(A_,16)}, {a(AG+4*(q%2),4)}, {v(PT(q),4)}, {v(A_,16)}')
        E(gl[q * per:(q + 1) * per])
    E(stamp_ops(1))
    E(chk(NE, 14))
    respin('L_rl', NE, 14)
    E(stamp_ops(1))
    for q in range(NE, 14):
        e(f'{MF} {v(A_,16)}, {a(AG+4*(q%2),4)}, {v(PT(q),4)}, {v(A_,16)}')
    for r in range(8):
        E([f'v_fma_f32 {v(XF+2*r)}, {v(A_+2*r)}, {v(BF+2*r)}, {v(XF+2*r)}', f'v_fma_f32 {v(XF+2*r+1)}, {v(A_+2*r+1)}, {v(BF+2*r+1)}, {v(XF+2*r+1)}',
           f'v_cvt_pk_bf16_f32 {v(EP+r)}, {v(XF+2*r)}, {v(XF+2*r+1)}'])
        if r % 4 == 3:
            e(f'buffer_store_dwordx4 {v(EP+r-3,4)}, {v(go+2)}, {s(sT1,4)}, {s(sCol)} offen offset:{32*(r//4)}')
    p.label('L_fin')
    if PROF:
        e('s_waitcnt vmcnt(0)')
        E(stamp_ops())
        E(stamp_ops())
        e(f's_memrealtime {s(sSt,2)}')
        e(f'v_writelane_b32 {v(vStamp)}, s30, 14')
        e(f'v_writelane_b32 {v(vStamp)}, {s(sSt)}, 15')
        e(f's_lshl_b32 {s(sA)}, s2, 2')
        e(f's_add_u32 {s(sA)}, {s(sA)}, {s(sW)}')
        e(f's_lshl_b32 {s(sA)}, {s(sA)}, 6')
        e(f's_add_u32 {s(sA)}, {s(sA)}, {WS_PROF}')
        e(f'v_lshlrev_b32 v0, 2, {v(vLane)}')
        e('s_mov_b64 exec, 0xffff')
        e(f'buffer_store_dword {v(vStamp)}, v0, {s(sWS,4)}, {s(sA)} offen')
    p.label('L_end')
    e('s_endpgm')
    p.label('L_tail7')
    cv, stv = epi_cvt(6), epi_st(6)
    E(cv[:12] + stv[:1] + cv[12:] + stv[1:])
    e('s_branch L_fin')
    for f in tail_code:
        f()
    p.label('L_codeend')
    fix_code(p, 'L_fix0', X0, X1, P0, first=True)
    fix_code(p, 'L_fixa', X1, X0, P1)
    fix_code(p, 'L_fixb', X0, X1, P0)
    fix_code(p, 'L_fixl', X1, None, P1)
    return p


def check_streams(p):
    last = {}
    own = {}
    flows = {}
    for n, i in enumerate(p.ins):
        if i.kind == 'label' and i.op == 'L_end':
            break
        if i.kind in ('label', 'dir'):
            continue
        sid = getattr(i, 'sid', 'mf' if i.kind == 'mfma' else 'lin')
        src = list(i.src)
        dst = list(i.dst)
        if i.op.startswith(('s_cselect', 's_addc', 's_subb', 's_cbranch_scc')):
            src.append('scc')
        if i.kind == 'salu' and not i.op.startswith(('s_mov', 's_cselect', 's_mul', 's_getpc')):
            dst.append('scc')
        dst += getattr(i, 'clob', [])
        for r in src:
            if r in last and last[r] != sid:
                if (sid, r) in own and sid not in ('mf', 'lin'):
                    print('CONFLICT', r, 'writer', last[r], 'reader', sid, '|', i.text)
                flows.setdefault((str(last[r][0] if isinstance(last[r], tuple) else last[r]),
                                  str(sid[0] if isinstance(sid, tuple) else sid)), set()).add(r)
        for r in dst:
            last[r] = sid
            own[(sid, r)] = n
    if OPT.get('flows'):
        for k in sorted(flows):
            rs = sorted(flows[k], key=lambda r: (r[0], int(r[1:]) if r[1:].isdigit() else 0))
            print(k, ' '.join(rs[:24]), '...' if len(rs) > 24 else '')


def kd(name, nv, acc, ns=102):
    return f'''.p2align 6
.amdhsa_kernel {name}
  .amdhsa_next_free_vgpr {nv}
  .amdhsa_next_free_sgpr {ns}
  .amdhsa_accum_offset {acc}
  .amdhsa_group_segment_fixed_size 0
  .amdhsa_kernarg_size 104
  .amdhsa_user_sgpr_count 2
  .amdhsa_user_sgpr_kernarg_segment_ptr 1
  .amdhsa_system_sgpr_workgroup_id_x 1
.end_amdhsa_kernel
'''


def main():
    p = gen_main()
    check_streams(p)
    out = ['; fused sliding-window attention + mixture-of-depths block (generated by work/gen3.py)',
           '; @launch kernel=main_kernel grid=(256,1,1) block=(256,1,1) lds=163840',
           '.amdgcn_target "amdgcn-amd-amdhsa--gfx950"', '.text',
           '.globl main_kernel\n.p2align 8\n.type main_kernel,@function']
    out.append(p.finalize((0, 1, 2)))
    if OPT.get('est'):
        p.estimate()
    out.append('.section .rodata,"a"')
    out.append(kd('main_kernel', 256 + NAGPR, 256))
    open(sys.argv[1], 'w').write('\n'.join(out))


if __name__ == '__main__':
    main()
```

```python
import sys, struct
import asmlib
from asmlib import Prog, I

OPT = dict(x.split('=') for x in sys.argv[2:] if '=' in x)
PROF = int(OPT.get('prof', 0))
LOG2E = 1.4426950408889634
CSC = LOG2E / 16


def opt(k, d):
    return int(OPT.get(k, d))


def fbits(x):
    return '0x%08x' % struct.unpack('<I', struct.pack('<f', x))[0]


def v(i, n=1):
    return 'v%d' % i if n == 1 else 'v[%d:%d]' % (i, i + n - 1)


def a(i, n=1):
    return 'a%d' % i if n == 1 else 'a[%d:%d]' % (i, i + n - 1)


def s(i, n=1):
    return 's%d' % i if n == 1 else 's[%d:%d]' % (i, i + n - 1)


MF = 'v_mfma_f32_32x32x16_bf16'
MF16 = 'v_mfma_f32_16x16x32_bf16'

WS_PART = 0
WS_Y = 0x1000000
WS_STATS = WS_Y + 0x10000
WS_PROF = 0x3000000
OOB = 0x7ff00000

XA = 131072
XL = 98304
L_WR = XA + 6144
L_ONE = XA + 7168
L_ST = XA + 14336
L_MEX = XA + 18432
L_H = XA + 22528

QO, X0, X1, Z, P0, P1, OV = 0, 32, 48, 64, 80, 88, 96
XR = 32
ACC = 96
MT = 208
vDA, vDB = 224, 228
vK = 232
vA, vB = 238, 239
vTr = 240
vT = 242
vL, vLc, vMx, vSp, vL16, vLane = 246, 247, 248, 249, 250, 251
vTmp = 252
vStamp = 255
vDQ, vDX, nT, D1, D2, D4, vW, vXa, vXs, vWr, vRow, vPf = 0, 4, 8, 12, 16, 20, 24, 26, 28, 29, 30, 31
FB, QP, O7, XB, PF, AG, YR, NEG, PFD = 0, 64, 96, 112, 112, 176, 184, 248, 252
XS_, WA_ = 112, 168
NAGPR = 256
pX, pK, pV, pWQ, pWO, pWR, pG, pU, pD, pOUT, pDBG, pWS = 4, 6, 8, 10, 12, 16, 18, 20, 22, 24, 26, 28
sX, sQ, sK, sV, sWS, sMO, sDBG, sT1, sT2 = 32, 36, 40, 44, 48, 52, 56, 60, 64
sW, sW4k, sKvh, sQt, sOff, sThr, sH, sRg = 68, 69, 70, 71, 72, 73, 74, 75
sTile = 76
sIn, sPub, sSel0, sSel1 = 83, 84, 85, 86
sA, sB, sC, sD_, sCol = 87, 88, 89, 14, 15
sM = 90
sRet = 98
sSt = 100
sPart = 4
sPf, sDn = 0, 1
vPg = 236
sWi = 3
THR = 16.0
TORD = [7, 0, 1, 2, 3, 4, 5, 6]


def Oreg(t):
    return v(OV + 16 * t, 16) if t < 7 else a(O7, 16)


def cost(o):
    t = o.text if isinstance(o, I) else o
    if t.endswith(':'):
        return 0
    if t.startswith('WAITV'):
        return 4
    if t.startswith(asmlib.TRANS):
        return 8
    if t.startswith('ds_write_b128'):
        return opt('cw', 40)
    if t.startswith('ds_write'):
        return 16
    if t.startswith('buffer_store_dwordx4'):
        return opt('cs', 24)
    if t.startswith(('buffer_', 'global_')):
        return opt('cd', 12)
    if t.startswith('v_mfma'):
        return 16
    if t.startswith('s_barrier'):
        return 8
    return 4


class Sched:
    nfill = 0

    def __init__(self, n):
        self.mf = [None] * n
        self.pre = [[] for _ in range(n)]
        self.rd = [[] for _ in range(n)]
        self.val = [[] for _ in range(n)]
        self.post = [[] for _ in range(n)]
        self.c = [0] * n

    def add(self, lst, g, ops, sid=None):
        if sid is None:
            f = sys._getframe(1)
            while f.f_code.co_name in ('at', 'fill', 'add'):
                f = f.f_back
            sid = f.f_lineno
        if not isinstance(ops, (list, tuple)):
            ops = [ops]
        for o in ops:
            if not isinstance(o, I):
                o = I(o)
            o.sid = sid
            lst[g].append(o)
            self.c[g] += cost(o)

    def at(self, g, ops):
        self.add(self.val, g, ops)

    def fill(self, ops, g0, g1, maxper=None):
        grp = [o if isinstance(o, (list, tuple)) else [o] for o in ops]
        cs = [sum(cost(o) for o in x) for x in grp]
        big = 24

        def tryit(L):
            g, pos, c, n = g0, [], self.c[g0], 0
            for x in cs:
                while c + min(x, big) > max(L, min(x, big) + 8 if x >= big else 0) or (maxper and n >= maxper):
                    g += 1
                    if g > g1:
                        return None
                    c, n = self.c[g], 0
                pos.append(g)
                c += x
                n += 1
            return pos
        lo, hi = 0, 4000
        while lo < hi:
            mid = (lo + hi) // 2
            if tryit(mid) is None:
                lo = mid + 1
            else:
                hi = mid
        pos = tryit(lo)
        Sched.nfill += 1
        sid = (sys._getframe(1).f_lineno, Sched.nfill)
        for x, g in zip(grp, pos):
            self.add(self.val, g, x, sid)
        return pos[-1]

    def emit(self, p, g0, g1):
        for g in range(g0, g1):
            p.e(self.mf[g])
            for lst in (self.pre, self.rd, self.val, self.post):
                for o in lst[g]:
                    p.e(o)


def stats_code(sx, sxx, mb, sd, t):
    return [
        f'v_mul_f32 {v(mb)}, {fbits(1/448)}, {v(sx)}',
        f'v_mul_f32 {v(t)}, {fbits(1/448)}, {v(sxx)}',
        f'v_fma_f32 {v(t)}, -{v(mb)}, {v(mb)}, {v(t)}',
        f'v_max_f32 {v(t)}, 0, {v(t)}',
        f'v_cvt_pk_bf16_f32 {v(t)}, {v(mb)}, {v(t)}',
        f'v_lshlrev_b32 {v(mb)}, 16, {v(t)}',
        f'v_and_b32 {v(t)}, 0xffff0000, {v(t)}',
        f'v_add_f32 {v(t)}, {fbits(1e-5)}, {v(t)}',
        f'v_cvt_pk_bf16_f32 {v(t)}, 0, {v(t)}',
        f'v_sqrt_f32 {v(t)}, {v(t)}',
        f'v_cvt_pk_bf16_f32 {v(sd)}, 0, {v(t)}',
    ]


def red64(r, t, op):
    out = []
    for pat in ('quad_perm:[1,0,3,2]', 'quad_perm:[2,3,0,1]', 'row_half_mirror', 'row_mirror'):
        out.append(f'{op}_dpp {v(r)}, {v(r)}, {v(r)} {pat} row_mask:0xf bank_mask:0xf')
    return out + red4g(r, t, op)


def red4g(r, t, op):
    return [f'v_mov_b32 {v(t)}, {v(r)}', f'v_permlane16_swap_b32 {v(r)}, {v(t)}', f'{op} {v(r)}, {v(r)}, {v(t)}',
            f'v_mov_b32 {v(t)}, {v(r)}', f'v_permlane32_swap_b32 {v(r)}, {v(t)}', f'{op} {v(r)}, {v(r)}, {v(t)}']


def top2(k, g1, t, m):
    return ([f'v_mov_b32 {v(g1)}, {v(k)}'] + red64(g1, t, 'v_max_u32') +
            [f'v_cmp_eq_u32_e64 {s(m,2)}, {v(g1)}, {v(k)}', f'v_cndmask_b32_e64 {v(k)}, {v(k)}, 0, {s(m,2)}'] +
            red64(k, t, 'v_max_u32'))


def rbf(r):
    return [f'v_cvt_pk_bf16_f32 {v(r)}, 0, {v(r)}']


def srd(dst, ptr, size):
    return [f's_mov_b32 {s(dst)}, {s(ptr)}', f's_and_b32 {s(dst+1)}, {s(ptr+1)}, 0xffff',
            f's_mov_b32 {s(dst+2)}, {size}', f's_mov_b32 {s(dst+3)}, 0x20000']


def srd_off(dst, ptr, off, size):
    o = []
    if off is not None:
        o.append([f's_add_u32 {s(dst)}, {s(ptr)}, {s(off)}', f's_addc_u32 {s(dst+1)}, {s(ptr+1)}, 0'])
        ptr = dst
    return o + [[f's_sub_u32 {s(dst)}, {s(ptr)}, 3072', f's_subb_u32 {s(dst+1)}, {s(ptr+1)}, 0'],
                f's_and_b32 {s(dst+1)}, {s(dst+1)}, 0xffff',
                f's_mov_b32 {s(dst+2)}, {size}', f's_mov_b32 {s(dst+3)}, 0x20000']


def softmax_ops(X, P):
    grp = []
    for q in range(8):
        t0, t1 = vT + 2 * (q % 2), vT + 2 * (q % 2) + 1
        ex = [f'v_exp_f32 {v(t0)}, {v(X+2*q)}', f'v_exp_f32 {v(t1)}, {v(X+2*q+1)}']
        if q == 0:
            f = [f'v_add_f32 {v(vLc)}, {v(t0)}, {v(t1)}']
        else:
            f = [f'v_add_f32 {v(vLc)}, {v(vLc)}, {v(t0)}', f'v_add_f32 {v(vLc)}, {v(vLc)}, {v(t1)}']
        f.append(f'v_cvt_pk_bf16_f32 {v(P+q)}, {v(t0)}, {v(t1)}')
        grp.append((ex, f))
    out = []
    for q in range(9):
        ex = grp[q][0] if q < 8 else [None, None]
        f = grp[q - 1][1] if q > 0 else []
        h = (len(f) + 1) // 2
        out += [x for x in [ex[0]] + f[:h] + [ex[1]] + f[h:] if x]
    return out


def max_ops(X):
    mx = [f'v_max3_f32 {v(vMx)}, {v(X)}, {v(X+1)}, {v(X+2)}']
    for i in range(3, 15, 2):
        mx.append(f'v_max3_f32 {v(vMx)}, {v(vMx)}, {v(X+i)}, {v(X+i+1)}')
    mx.append(f'v_max_f32 {v(vMx)}, {v(vMx)}, {v(X+15)}')
    return mx


def fix_code(p, label, Xc, Xn, P, first=False):
    p.label(label)
    e = p.e
    e('s_nop 15')
    e('s_nop 7')
    t = vTmp
    for o in max_ops(Xc):
        e(o)
    e(f'v_mov_b32 {v(t)}, {v(vMx)}')
    e(f'v_permlane32_swap_b32 {v(vMx)}, {v(t)}')
    e(f'v_max_f32 {v(vMx)}, {v(vMx)}, {v(t)}')
    if not first:
        e(f'v_max_f32 {v(vMx)}, 0, {v(vMx)}')
        e(f'v_exp_f32 {v(t)}, -{v(vMx)}')
        for r in range(112):
            e(f'v_mul_f32 {v(OV+r)}, {v(OV+r)}, {v(t)}')
        for r in range(16):
            e(f'v_accvgpr_read_b32 {v(t+1)}, {a(O7+r)}')
            e(f'v_mul_f32 {v(t+1)}, {v(t+1)}, {v(t)}')
            e(f'v_accvgpr_write_b32 {a(O7+r)}, {v(t+1)}')
        e(f'v_mul_f32 {v(vL)}, {v(vL)}, {v(t)}')
    for r in range(16):
        e(f'v_sub_f32 {v(Z+r)}, {v(Z+r)}, {v(vMx)}')
        e(f'v_sub_f32 {v(Xc+r)}, {v(Xc+r)}, {v(vMx)}')
        if Xn is not None:
            e(f'v_sub_f32 {v(Xn+r)}, {v(Xn+r)}, {v(vMx)}')
    for o in softmax_ops(Xc, P):
        e(o)
    e('s_nop 3')
    e(f's_setpc_b64 {s(sRet,2)}')


def gen_main():
    p = Prog('main')
    e = p.e
    NS = 60
    S = Sched(16 * NS)
    tail_code = []
    nstamp = [0]
    G = opt('G', 1)
    LG = G.bit_length() - 1
    MOE = not opt('nomoe', 0)
    OMOD = OPT.get('omod', '').replace('+', ' ')
    PFON = opt('pf', 1)

    def stamp_ops(lvl=0):
        if not PROF or (lvl and lvl != opt('plvl', 1)):
            return []
        k = nstamp[0]
        nstamp[0] += 1
        ops = []
        if k:
            ops.append(f'v_writelane_b32 {v(vStamp)}, {s(sSt)}, {k-1}')
        ops.append(f's_mem{"real" if PROF == 2 else ""}time {s(sSt,2)}')
        return ops

    def E(ops):
        for o in ops:
            if isinstance(o, (list, tuple)):
                E(o)
            else:
                e(o)

    def side(name, cond, var, body, clob=(), dup=False):
        br = I(f's_cbranch_scc1 {name}', taken=lambda k, vr: vr == var)
        br.clob = list(clob)
        tail_code.append(lambda: (p.label(name), body(), e(f's_branch {name}r')))
        if dup:
            tail_code.append(lambda: (p.label(name + 'b'), body(), e(f's_branch {name}rb')))
        return list(cond) + [br, f'{name}r:']

    GORD = [(0, 0), (1, 0), (0, 1), (1, 1)] + [(n, q) for n in range(2, 7) for q in (0, 1)]

    def dma(vd, sr, j):
        return I(f'buffer_load_dwordx4 {v(vd+j)}, {s(sr,4)}, {s(sOff)} offen offset:{1024*j} lds', stream='ring')

    def chunk_ops(d):
        slot = (d % 8) * 16384
        pre = [f's_add_u32 m0, {s(sW4k)}, {slot}']
        if d < 28:
            vd, sr = vDQ, sQ
            pre.append(f's_mov_b32 {s(sOff)}, {(d >> 1) * 32 * 8192 + (d & 1) * 512}')
        elif d < 60:
            t = d - 28
            if t < 2:
                isk, j = True, t
            elif t >= 30:
                isk, j = False, t - 16
            else:
                isk, j = (t % 2 == 1), ((t + 1) // 2 if t % 2 else (t - 2) // 2)
            vd, sr = (vDA, sK) if isk else (vDB, sV)
            pre.append(f's_mov_b32 {s(sOff)}, {j * 16384}')
        else:
            st, hw = (d - 60) >> 1, d & 1
            n, par = GORD[st]
            vd, sr = vDA, sQ
            pre.append(f's_add_u32 {s(sOff)}, {s(sTile+n)}, {(hw ^ par) * 256 * 896 + hw * 64}')
        return [(list(pre) if j == 0 else []) + [dma(vd, sr, j)] for j in range(4)]

    def pair_ops(n, H):
        s0 = (4 + 2 * (2 * (n - 2) + H)) % 8
        out, cur = [], None
        for q, (T, j) in enumerate([(0, 0), (1, 0), (1, 1), (0, 1), (0, 2), (1, 2), (1, 3), (0, 3)]):
            ops = []
            if q == 0:
                ops.append(f's_add_u32 {s(sOff)}, {s(sTile+n)}, {H * 256 * 896}')
            if T != cur:
                ops.append(f's_add_u32 m0, {s(sW4k)}, {(s0 + T) * 16384}')
                cur = T
            ops.append(dma(vDB if T else vDA, sQ, j))
            out.append(ops)
        return out

    def waitring(d):
        return I('WAITV', waitv=('ring', lambda k: 4 * (d + 1)))

    def waitv(st, n):
        return I('WAITV', waitv=(st, lambda k: n))

    p.label('main_kernel')
    e('s_cmp_ge_u32 s2, 256')
    e('s_cbranch_scc1 L_end', taken=lambda k, var: False)
    if PROF or opt('dbgt', 0):
        e('s_memrealtime s[30:31]')
    E(stamp_ops())
    e('s_load_dwordx16 s[4:19], s[0:1], 0')
    e('s_load_dwordx8 s[20:27], s[0:1], 64')
    e('s_load_dwordx2 s[28:29], s[0:1], 96')
    t0, t1, t2 = vTmp, vTmp + 1, vTmp + 2
    l4, c4, f4, l15 = vT, vT + 1, vT + 2, vT + 3
    e(f'v_lshrrev_b32 {v(t0)}, 6, v0')
    e(f'v_and_b32 {v(vLane)}, 63, v0')
    e(f'v_readfirstlane_b32 {s(sW)}, {v(t0)}')
    if G == 1:
        e(f's_and_b32 {s(sKvh)}, s2, 7')
        e(f's_lshr_b32 {s(sQt)}, s2, 3')
    else:
        e(f's_and_b32 {s(sKvh)}, s2, {8//G - 1}')
        e(f's_lshl_b32 {s(sKvh)}, {s(sKvh)}, {LG}')
        e(f's_bfe_u32 {s(sA)}, s2, {3 | (LG << 16)}')
        e(f's_add_u32 {s(sKvh)}, {s(sKvh)}, {s(sA)}')
        e(f's_bfe_u32 {s(sQt)}, s2, {(3 - LG) | (LG << 16)}')
        e(f's_lshl_b32 {s(sQt)}, {s(sQt)}, {5 - LG}')
        e(f's_lshr_b32 {s(sA)}, s2, {3 + LG}')
        e(f's_add_u32 {s(sQt)}, {s(sQt)}, {s(sA)}')
    e(f's_lshl_b32 {s(sWi)}, {s(sQt)}, 2')
    e(f's_add_u32 {s(sWi)}, {s(sWi)}, {s(sW)}')
    if opt('pfc', 1):
        e(f's_getpc_b64 {s(sT2,2)}')
        p.label('L_pc')
        e(f's_lshr_b32 {s(sA)}, s2, 3')
        e(f's_lshl_b32 {s(sA)}, {s(sA)}, 2')
        e(f's_add_u32 {s(sA)}, {s(sA)}, {s(sW)}')
        e(f's_lshl_b32 {s(sA)}, {s(sA)}, 9')
        e(f'v_and_b32 {v(t0)}, 3, {v(vLane)}')
        e(f's_and_b32 {s(sT2+1)}, {s(sT2+1)}, 0xffff')
        e(f's_mov_b32 {s(sT2+2)}, L_codeend-L_pc')
        e(f's_mov_b32 {s(sT2+3)}, 0x20000')
        e(f'v_lshlrev_b32 {v(t0)}, 7, {v(t0)}')
        e(f'buffer_load_dword {a(PFD+1)}, {v(t0)}, {s(sT2,4)}, {s(sA)} offen')
    e(f's_and_b32 {s(sB)}, {s(sWi)}, {128//G - 1}')
    e(f's_lshl_b32 {s(sB)}, {s(sB)}, {3 + LG}')
    e(f'v_min_u32 {v(vSp)}, {8*G - 1}, {v(vLane)}')
    e(f'v_add_u32 {v(vSp)}, {s(sB)}, {v(vSp)}')
    e(f'v_lshrrev_b32 {v(vPf)}, 3, {v(vSp)}')
    e(f'v_lshlrev_b32 {v(vPf)}, 13, {v(vPf)}')
    e(f'v_and_b32 {v(t1)}, 7, {v(vSp)}')
    e(f'v_lshl_add_u32 {v(vPf)}, {v(t1)}, 7, {v(vPf)}')

    def pfl(name):
        k, i = name[0], int(name[1])
        vo, sr, off = {'q': (vPf, sQ, 3072 + i * 128 * 8192), 'k': (vSp, sK, 3072 + i * 131072), 'v': (vSp, sV, 3072 + i * 131072),
                       'o': (vSp, sQ, 3072 + i * 131072), 'g': (vPg, sT1, i * 256 * G * 3584), 'u': (vPg, sT2, i * 256 * G * 3584),
                       'd': (vSp, sMO, i * 131072)}[k]
        ld = I(f'buffer_load_dword {a(PFD)}, {v(vo)}, {s(sr,4)}, {s(sPf)} offen')
        ld.dst = []
        return [f's_add_u32 {s(sPf)}, {s(sDn)}, {off}' if k == 'd' else f's_mov_b32 {s(sPf)}, {off}', ld]
    PFS = dict(x.split(':') for x in OPT.get('pfs', 'q0:A,q1:B,q2:0,q3:2,k0:4,v0:6,g0:15,u0:15,g1:15,u1:15,d0:17,d1:17,k1:17,v1:17,'
                                             'o0:27,o1:29,o2:31,o3:33').split(','))
    if G == 2:
        for k_ in ('g1', 'u1', 'd1'):
            PFS.pop(k_, None)

    def pf_at(tag):
        for k_, w_ in PFS.items():
            if w_ == tag:
                E(pfl(k_))
    e(f'v_lshrrev_b32 {v(f4)}, 4, {v(vLane)}')
    e(f'v_and_b32 {v(l15)}, 15, {v(vLane)}')
    e(f'v_lshrrev_b32 {v(l4)}, 2, {v(vLane)}')
    e(f'v_and_b32 {v(c4)}, 3, {v(vLane)}')
    e(f'v_xor_b32 {v(t2)}, {v(c4)}, {v(f4)}')
    e(f'v_mul_u32_u24 {v(t0)}, 896, {v(l4)}')
    e(f'v_lshl_add_u32 {v(t0)}, {v(t2)}, 4, {v(t0)}')
    for j in range(4):
        e(f'v_add_u32 {v(vDX+j)}, {64*j - 1024*j + 3072}, {v(t0)}')
    e(f'v_lshlrev_b32 {v(vL16)}, 4, {v(vLane)}')
    e(f's_mul_i32 {s(sOff)}, {s(sWi)}, {16*896}')
    e(f's_lshl_b32 {s(sW4k)}, {s(sW)}, 12')
    e(f's_lshl_b32 {s(sC)}, {s(sW)}, 13')
    e(f's_lshr_b32 {s(sH)}, {s(sW)}, 1')
    e(f's_and_b32 {s(sRg)}, {s(sW)}, 1')
    e(f's_lshl_b32 {s(sB)}, {s(sKvh)}, 10')
    e(f's_mov_b32 m0, {L_WR}')
    E(srd_off(sQ, pWQ, sB, 0))
    E(stamp_ops(2))
    e(f's_sub_u32 {s(sQ+2)}, {448*8192+3072}, {s(sB)}')
    pf_at('A')
    E(srd(sT1, pWR, 896))
    e(I(f'buffer_load_dwordx4 {v(vL16)}, {s(sT1,4)}, 0 offen lds', stream='wr'))
    E(srd_off(sX, pX, None, 2048 * 896 + 3072))
    xdma = []
    for i in range(14):
        o = []
        if i % 4 == 0:
            o.append(f's_add_u32 m0, {s(sC)}, {XL + (i >> 3) * 32768 + ((i >> 2) & 1) * 4096}')
            if i:
                o.append(f's_add_u32 {s(sOff)}, {s(sOff)}, 256')
        o.append(I(f'buffer_load_dwordx4 {v(vDX+i%4)}, {s(sX,4)}, {s(sOff)} offen offset:{1024*(i%4)} lds', stream='x'))
        xdma.append(o)

    def pub0():
        e(f'v_mov_b64 {v(D2,2)}, 0')
        e(f'v_mov_b64 {v(D2+2,2)}, 0')
        e(f's_lshl_b32 {s(sA)}, {s(sWi)}, 10')
        e(f's_add_u32 {s(sA)}, {s(sA)}, {WS_Y}')
        e(f's_cmp_lt_u32 {s(sQt)}, 4')
        e(f's_cselect_b32 {s(sA)}, {s(sA)}, {OOB}')
        e(I(f'buffer_store_dwordx4 {v(D2,4)}, {v(vL16)}, {s(sWS,4)}, {s(sA)} offen sc1', stream='pub'))
    su0 = [f'v_lshlrev_b32 {v(t1)}, 13, {v(l4)}', f'v_lshl_add_u32 {v(t1)}, {v(c4)}, 4, {v(t1)}',
           f's_lshl_b32 {s(sB)}, {s(sH)}, 17', f's_lshl_b32 {s(sA)}, {s(sRg)}, 8', f's_add_u32 {s(sB)}, {s(sB)}, {s(sA)}',
           f'v_add_u32 {v(t1)}, {s(sB)}, {v(t1)}']
    su0 += [f'v_add_u32 {v(vDQ+j)}, {64*j - 1024*j + 3072}, {v(t1)}' for j in range(4)]
    su0 += [f's_lshl_b32 {s(sA)}, {s(sKvh)}, 20', f's_add_u32 {s(sA)}, {s(sA)}, {1536*512}']
    su0 += srd_off(sK, pK, sA, 512 * 512 + 3072) + srd_off(sV, pV, sA, 512 * 512 + 3072)
    su0 += srd(sWS, pWS, 0x10000000) + srd(sDBG, pDBG, 256)
    z7 = lambda sr: [f's_cmp_eq_u32 {s(sKvh)}, 7', f's_cselect_b32 {s(sr+2)}, 0, {s(sr+2)}']
    su0 += srd(sT1, pG, 448 * 3584) + [z7(sT1)] + srd(sT2, pU, 448 * 3584) + [z7(sT2)] + srd(sMO, pD, 1792 * 896) + [z7(sMO)]
    su0 += [f's_lshl_b32 {s(sD_)}, {s(sKvh)}, 5', f's_add_u32 {s(sD_)}, {s(sD_)}, {s(sQt)}',
            f's_andn2_b32 {s(sA)}, {s(sD_)}, {32//G - 1}', f's_mul_i32 {s(sDn)}, {s(sA)}, {8*896}', f's_lshl_b32 {s(sA)}, {s(sA)}, 4',
            f'v_lshrrev_b32 {v(vPg)}, {2 - LG}, {v(vSp)}', f'v_mul_u32_u24 {v(vPg)}, 3584, {v(vPg)}',
            f'v_and_b32 {v(t1)}, {4//G - 1}, {v(vSp)}', f'v_lshl_add_u32 {v(vPg)}, {v(t1)}, 7, {v(vPg)}', f'v_add_u32 {v(vPg)}, {s(sA)}, {v(vPg)}',
            f'v_lshlrev_b32 {v(vSp)}, 7, {v(vSp)}']
    su0 += [f'v_mov_b32 {v(nT+r)}, 0x3f803f80' for r in range(4)]
    su0 += [f'v_add_u32 {v(t0)}, {L_ONE}, {v(vL16)}', f'ds_write_b128 {v(t0)}, {v(nT,4)}',
            f'v_and_b32 {v(t0)}, 1, {v(vLane)}', f'v_lshlrev_b32 {v(t0)}, 10, {v(t0)}', f'v_sub_u32 {v(t0)}, {L_ONE}, {v(t0)}',
            f'v_lshl_add_u32 {v(vWr)}, {v(f4)}, 4, {v(t0)}']
    setup = su0
    hh = t0
    setup += [f'v_lshrrev_b32 {v(hh)}, 5, {v(vLane)}', f'v_lshlrev_b32 {v(vTr)}, 9, {v(hh)}']
    for off, sh, wd in ((2, 6, 2), (4, 5, 1), (0, 4, 1), (1, 3, 1)):
        setup += [f'v_bfe_u32 {v(t1)}, {v(vLane)}, {off}, {wd}', f'v_lshl_add_u32 {v(vTr)}, {v(t1)}, {sh}, {v(vTr)}']
    setup += [f'v_add_u32 {v(vTr+1)}, 0x10000, {v(vTr)}', f's_lshl_b32 {s(sA)}, {s(sH)}, 14',
              f'v_add_u32 {v(vW)}, {s(sA)}, {v(vTr)}', f'v_add_u32 {v(vW+1)}, {s(sA)}, {v(vTr+1)}',
              f'v_lshrrev_b32 {v(t1)}, 2, {v(l15)}', f'v_xor_b32 {v(vXs)}, {v(t1)}, {v(f4)}', f'v_lshlrev_b32 {v(vXs)}, 4, {v(vXs)}',
              f'v_lshl_add_u32 {v(vXs)}, {v(l15)}, 6, {v(vXs)}', f's_add_u32 {s(sA)}, {s(sC)}, {XL}', f'v_add_u32 {v(vXs)}, {s(sA)}, {v(vXs)}',
              f'v_xor_b32 {v(vXa)}, {v(t1)}, {v(hh)}', f'v_lshlrev_b32 {v(vXa)}, 4, {v(vXa)}', f'v_lshl_add_u32 {v(vXa)}, {v(l15)}, 6, {v(vXa)}',
              f'v_and_b32 {v(t1)}, 1, {v(f4)}', f'v_lshl_add_u32 {v(vXa)}, {v(t1)}, 13, {v(vXa)}',
              f's_lshl_b32 {s(sA)}, {s(sRg)}, 14', f's_add_u32 {s(sA)}, {s(sA)}, {XL}', f'v_add_u32 {v(vXa)}, {s(sA)}, {v(vXa)}',
              f'v_xor_b32 {v(vXa+1)}, 32, {v(vXa)}',
              f's_lshl_b32 {s(sA)}, {s(sW)}, 4', f'v_add_u32 {v(vRow)}, {s(sA)}, {v(l15)}']
    for r in range(4):
        setup += [f's_mov_b32 {s(sM+2*r)}, {hex(0x00100001 << r)}', f's_mov_b32 {s(sM+2*r+1)}, {hex(0x10000100 << r)}']
    setup += [f's_lshl_b32 {s(sA)}, {s(sH)}, 13', f's_lshl_b32 {s(sB)}, {s(sRg)}, 8', f's_add_u32 {s(sA)}, {s(sA)}, {s(sB)}',
              f'v_lshlrev_b32 {v(t1)}, 9, {v(l4)}', f'v_add_u32 {v(t1)}, {s(sA)}, {v(t1)}',
              f'v_lshl_add_u32 {v(t2)}, {v(t2)}, 4, {v(t1)}', f'v_lshl_add_u32 {v(t1)}, {v(c4)}, 4, {v(t1)}']
    for j in range(4):
        setup += [f'v_add_u32 {v(vDA+j)}, {64*j - 1024*j + 3072}, {v(t2)}', f'v_add_u32 {v(vDB+j)}, {64*j - 1024*j + 3072}, {v(t1)}']
    setup += [f'v_bfe_u32 {v(t2)}, {v(vLane)}, 2, 1', f'v_bfe_u32 {v(t1)}, {v(vLane)}, 3, 1',
              f'v_lshl_add_u32 {v(t2)}, {v(t2)}, 1, {v(t1)}', f'v_lshl_add_u32 {v(t1)}, {v(t2)}, 2, {v(c4)}',
              f'v_xor_b32 {v(t2)}, {v(t2)}, {v(hh)}',
              f'v_lshlrev_b32 {v(t2)}, 4, {v(t2)}', f'v_lshl_add_u32 {v(t2)}, {v(t1)}, 6, {v(t2)}',
              f'v_bfe_u32 {v(t1)}, {v(vLane)}, 4, 1', f'v_lshl_add_u32 {v(vK)}, {v(t1)}, 13, {v(t2)}',
              f'v_xor_b32 {v(vK+1)}, 32, {v(vK)}']
    setup += [f'v_add_u32 {v(vK+2+i)}, 0x10000, {v(vK+i)}' for i in range(2)]
    setup += [f's_mov_b32 {s(sThr)}, {fbits(65536.0)}',
              f's_mul_i32 {s(sA)}, {s(sRg)}, 14', f's_mul_i32 {s(sB)}, {s(sH)}, 7', f's_add_u32 {s(sA)}, {s(sA)}, {s(sB)}',
              f's_mul_i32 {s(sB)}, {s(sQt)}, 28', f's_add_u32 {s(sA)}, {s(sA)}, {s(sB)}', f's_lshl_b32 {s(sIn)}, {s(sA)}, 14',
              f's_add_u32 {s(sA)}, {s(sKvh)}, 1']
    for n in range(7):
        setup += [[f's_cmp_ge_u32 {s(sA)}, 7', f's_cselect_b32 {s(sB)}, 7, 0'], f's_sub_u32 {s(sA)}, {s(sA)}, {s(sB)}',
                  f's_lshl_b32 {s(sTile+n)}, {s(sA)}, 7', f's_lshl_b32 {s(sB)}, {s(sA)}, 14', f's_add_u32 {s(sPart+n)}, {s(sB)}, {s(sIn)}',
                  [f's_cmp_eq_u32 {s(sKvh)}, 7', f's_cselect_b32 {s(sB)}, 6, {n}'], f's_lshl_b32 {s(sB)}, {s(sB)}, 11',
                  f's_add_u32 {s(sPart+n)}, {s(sPart+n)}, {s(sB)}', f's_add_u32 {s(sA)}, {s(sA)}, 1']
    setup += [f's_sub_u32 {s(sIn)}, {s(sPart+6)}, {6*2048}',
              [f's_cmp_eq_u32 {s(sKvh)}, 7', f's_cselect_b32 {s(sIn)}, {OOB}, {s(sIn)}', f's_cselect_b32 {s(sPart+6)}, {s(sPart+6)}, {OOB}',
               f's_cselect_b32 {s(sPub)}, {s(sW)}, 1'],
              f's_lshl_b32 {s(sCol)}, {s(sH)}, 6', f's_add_u32 {s(sCol)}, {s(sCol)}, {s(sTile+6)}',
              f'v_mov_b32 {v(t1)}, -1'] + [f'v_accvgpr_write_b32 {a(NEG+r)}, {v(t1)}' for r in range(4)]
    xb = opt('xb', 4)
    xper = opt('xper', 8)
    for i in range(14):
        E(xdma[i])
        if i >= xb - 1:
            E(setup[:xper]); setup = setup[xper:]
    E(stamp_ops(2))
    later = [chunk_ops(d) for d in range(6)]
    later = [g_ for c_ in later for g_ in c_]
    c01 = opt('c01', 8)
    for i in range(c01):
        E(later.pop(0))
        E(setup[:xper]); setup = setup[xper:]
    E(stamp_ops(2))
    pf_at('B')
    E(setup)
    E(side('L_pub0', [f's_cmp_eq_u32 {s(sKvh)}, 7'], 2, pub0))
    E(stamp_ops(2))
    e(waitv('wr', 1))
    for i in range(14):
        e(f'ds_read_b128 {a(WA_+4*i,4)}, {v(vWr)} offset:{64*i}')
    E(stamp_ops(2))
    for i in range(14):
        e(f'{MF16} {v(D4,4)}, {a(WA_+4*i,4)}, {v(nT,4)}, {v(D4,4) if i else 0}')
    E(stamp_ops())

    def xoff(i):
        return (i >> 3) * 32768 + (i & 7) * 1024

    def xs_read(i):
        return f'ds_read_b128 {a(XS_+4*i,4)}, {v(vXs)} offset:{xoff(i)}'

    def xf_read(i, ks):
        return f'ds_read_b128 {v(XR+8*(i%8)+4*ks,4)}, {v(vXa+ks)} offset:{xoff(i)}'

    def st_mf(i):
        return [f'{MF16} {v(D1,4)}, {a(WA_+4*i,4)}, {a(XS_+4*i,4)}, {v(D1,4) if i else 0}',
                f'{MF16} {v(D2,4)}, {a(XS_+4*i,4)}, {a(XS_+4*i,4)}, {v(D2,4) if i else 0}']
    grp = [(0, 4), (4, 8), (8, 12), (12, 14)]
    xfr = [xf_read(i, ks) for i in range(8) for ks in range(2)]
    for q, (i0, i1) in enumerate(grp):
        e(waitv('x', i1))
        for i in range(i0, i1):
            e(xs_read(i))
        if q == 3:
            e('s_barrier')
            E(stamp_ops(2))
        if q:
            for i in range(*grp[q - 1]):
                E(st_mf(i))
                for _ in range(opt('cper', 1)):
                    if later:
                        E(later.pop(0))
                if q == 3:
                    E(xfr[:2]); xfr = xfr[2:]
    for i in range(12, 14):
        E(st_mf(i))
        E(xfr[:2]); xfr = xfr[2:]
    E(xfr)
    E(stamp_ops())
    e(f'v_cndmask_b32_e64 {v(t1)}, 0, {v(D2)}, {s(sM,2)}')
    for r in range(1, 4):
        e(f'v_cndmask_b32_e64 {v(t1)}, {v(t1)}, {v(D2+r)}, {s(sM+2*r,2)}')
    E(red4g(t1, t2, 'v_add_f32'))
    mb, sd = D1 + 2, D1 + 3
    E(stats_code(D1, t1, mb, sd, t2))
    sa, sb_, kw = D2, D2 + 1, D2 + 2
    e(f'v_rcp_f32 {v(sd)}, {v(sd)}')
    e(f'v_fma_f32 {v(kw)}, -{v(mb)}, {v(D4+1)}, {v(D1+1)}')
    e(f'v_mul_f32 {v(sa)}, {fbits(CSC)}, {v(sd)}')
    e(f'v_lshlrev_b32 {v(t1)}, 4, {v(vRow)}')
    e(f'v_mul_f32_e64 {v(sb_)}, -{v(mb)}, {v(sa)}')
    e(f'v_mul_f32 {v(kw)}, {v(kw)}, {v(sd)}')
    e(f'v_add_u32 {v(t1)}, {L_ST}, {v(t1)}')
    e(f'ds_write_b96 {v(t1)}, {v(sa,3)}')

    def pub1():
        e(f's_lshl_b32 {s(sA)}, {s(sQt)}, 9')
        e(f's_add_u32 {s(sA)}, {s(sA)}, {WS_STATS}')
        e(f'v_lshlrev_b32 {v(t2)}, 3, {v(vRow)}')
        e(I(f'buffer_store_dwordx2 {v(sa,2)}, {v(t2)}, {s(sWS,4)}, {s(sA)} offen sc1', stream='pub'))
    E(side('L_pub1', [f's_cmp_eq_u32 {s(sKvh)}, 7'], 2, pub1))
    E(later)
    pf_at('C')
    e(f'v_and_b32 {v(t1)}, 31, {v(vLane)}')
    e(f'v_lshlrev_b32 {v(t1)}, 4, {v(t1)}')
    e(f's_lshl_b32 {s(sA)}, {s(sRg)}, 9')
    e(f's_add_u32 {s(sA)}, {s(sA)}, {L_ST}')
    e(f'v_add_u32 {v(t1)}, {s(sA)}, {v(t1)}')
    e(waitring(1))
    e('s_waitcnt lgkmcnt(0)')
    e('s_barrier')
    E(stamp_ops())
    e(f'ds_read_b64 {v(vA,2)}, {v(t1)}')

    def norm_ops(i, ks=None):
        ops = []
        for r in (range(8) if ks is None else range(4 * ks, 4 * ks + 4)):
            x = XR + 8 * (i % 8) + r
            q0, q1 = nT + 2 * (r % 2), nT + 2 * (r % 2) + 1
            ops += [f'v_lshlrev_b32 {v(q0)}, 16, {v(x)}', f'v_and_b32 {v(q1)}, 0xffff0000, {v(x)}',
                    f'v_fma_f32 {v(q0)}, {v(q0)}, {v(vA)}, {v(vB)}', f'v_fma_f32 {v(q1)}, {v(q1)}, {v(vA)}, {v(vB)}',
                    f'v_cvt_pk_bf16_f32 {v(x)}, {v(q0)}, {v(q1)}']
        return ops

    def fbuf(j, half=None):
        b = FB + 4 * (j % 16)
        return a(b, 4) if half is None else a(b + 2 * half, 2)

    def trr(buf, base, off):
        return [f'ds_read_b64_tr_b16 {fbuf(buf,0)}, {v(base)} offset:{off}',
                f'ds_read_b64_tr_b16 {fbuf(buf,1)}, {v(base)} offset:{off+256}']

    def qfrag(j):
        return v(QO + 4 * j, 4) if j < 8 else a(QP + 4 * (j - 8), 4)

    def set_step(t, mfs, reads, rdpos=None):
        g = 16 * t
        for j, (Dd, B, C) in enumerate(mfs):
            also = [fbuf(j + k) for k in range(1, 4)] if j % 4 == 0 else []
            B, B2 = B if isinstance(B, tuple) else (B, B)
            S.mf[g + j] = I(f'{MF} {Dd}, {fbuf(j)}, {B}, {C}', also=also)
            S.mf[g + j].alt = f'{MF} {Dd}, {fbuf(j)}, {B2}, {C}'
            gg = g + (rdpos[j] if rdpos else j - 8)
            if gg < 0:
                E(reads(j))
            else:
                S.add(S.rd, gg, reads(j))

    late = [-8, -7, -6, -5, -4, -3, -2, -1, 0, 0, 1, 2, 2, 3, 4, 4]
    for st in range(14):
        od = [(j >> 3, j & 7) for j in range(16)] if st < 13 else [(j & 1, j >> 1) for j in range(16)]
        slot = (2 * st) % 8

        def rd(j, slot=slot, od=od):
            return trr(j, vW + (slot >> 2), (slot & 3) * 16384 + (od[j][0] * 8 + od[j][1]) * 1024)
        set_step(st, [(v(ACC + 16 * tt, 16), v(XR + 8 * (st % 8) + 4 * ks, 4), v(ACC + 16 * tt, 16) if (st or ks) else '0')
                      for ks, tt in od], rd, rdpos=late)
    E(norm_ops(0, 0))

    def s_step(t, X, C0):
        slot = (t + 14) % 8

        def rd(j):
            return [f'ds_read_b128 {fbuf(j)}, {v(vK + 2*(slot >> 2) + (j & 1))} offset:{(slot & 3) * 16384 + (j >> 1) * 1024}']
        return [(v(X, 16), qfrag(j), v(X, 16) if j else C0) for j in range(16)], rd

    def pv_step(t, P, first=False, order=None):
        slot = (t + 14) % 8
        order = order or [(j // 8, j % 8) for j in range(16)]

        def rd(j):
            return trr(j, vTr + (slot >> 2), (slot & 3) * 16384 + (order[j][0] * 8 + order[j][1]) * 1024)
        return [(Oreg(tl), v(P + 4 * ks, 4), '0' if (first and ks == 0) else Oreg(tl)) for ks, tl in order], rd

    XS, PS = (X0, X1), (P0, P1)
    set_step(14, *s_step(14, X0, '0'))
    set_step(15, *s_step(15, X1, '0'))
    for j in range(14):
        set_step(16 + 2 * j, *pv_step(16 + 2 * j, PS[j % 2], first=(j == 0)))
        set_step(17 + 2 * j, *s_step(17 + 2 * j, XS[j % 2], v(Z, 16)))
    set_step(44, *pv_step(44, P0))
    set_step(45, *pv_step(45, P1, order=[(j % 2, TORD[j // 2]) for j in range(16)]))

    def ofrag(j):
        tl = TORD[j // 2]
        return (QO if tl == 7 else OV + 16 * tl) + 4 * (j % 2)
    vG = vK
    GACC = {}
    accs = [X0, X1, Z, P0]
    for st, (n, par) in enumerate(GORD):
        GACC[(n, par)] = accs[(n % 2) + 2 * par]
    for st, (n, par) in enumerate(GORD):
        s0 = (60 + 2 * st) % 8
        base, so = vG + (s0 >> 2), s0 & 3
        A_ = GACC[(n, par)]

        def rd(j, base=base, so=so):
            return trr(j, base, so * 16384 + (2 * TORD[j // 2] + j % 2) * 1024)

        def bop(j, par=par, n=n):
            own, oth = v(ofrag(j), 4), a(PF + 4 * j, 4)
            if n < 2:
                return oth if par else own
            return (oth, own) if par else (own, oth)
        set_step(46 + st, [(v(A_, 16), bop(j), v(A_, 16) if j else '0') for j in range(16)], rd, rdpos=late)

    BG = 8
    free = {6: 0, 7: 0}
    for st in range(14):
        S.add(S.pre, 16 * st + BG, [waitring(2 * st + 3), 's_waitcnt lgkmcnt(0)', 's_barrier'])
        for d in (2 * st + 8, 2 * st + 9):
            free[d] = 16 * st + BG + 1
    FBG = 4
    TMX = opt('tmx', 33)
    TCN = opt('tcn', 45)
    for t in range(15, 46, 2):
        w = [waitring(t + 16 if t < 45 else 61)]
        if t == TCN:
            w += [waitv('clr', 14)] + ([waitv('y', 4)] if MOE else [])
        S.add(S.pre, 16 * t + FBG, w + (['s_waitcnt lgkmcnt(0)'] if t in (TMX, 45) else []) + ['s_barrier'])
        for d in (t + 20, t + 21):
            if d > 35:
                free[d] = 16 * t + FBG + 1
    gBX = 16 * 46 + 1
    S.add(S.pre, gBX, ['s_waitcnt lgkmcnt(0)', 's_barrier'])
    free[67] = gBX + 1
    for st in range(13):
        g = 16 * (46 + st) + BG
        w = [waitring(63 + 2 * st)]
        if st < 10:
            w += ['s_waitcnt lgkmcnt(0)']
        S.add(S.pre, g, w + ['s_barrier'])
        free[68 + 2 * st] = g + 1
    g45, g46 = 16 * 45, 16 * 46
    g = 1
    dpos = {}
    fsp = opt('fsp', 2)
    g4pat = [int(c) for c in OPT.get('g4pat', '2222221')]
    d = 6
    while d < 88:
        grp_ = chunk_ops(d) if d < 68 else pair_ops(2 + (d - 68) // 4, ((d - 68) >> 1) & 1)
        for j, ops in enumerate(grp_):
            g = max(g, free[d])
            S.add(S.pre, g, ops)
            dpos[(d, j)] = g
            gLast = g
            if d >= 68:
                g += g4pat[j] if j < 7 else 1
            else:
                g += 2 if (d < 36 or d >= 63) else fsp
        d += 1 if d < 68 else 2
    busy = set(dpos.values())

    def vslot(g0, sp=2):
        g_ = g0
        while True:
            t = (g_ - FBG - 1) // 16
            t -= 1 - t % 2
            lastd = max([x for (d_, j_), x in dpos.items() if d_ in (t + 20, t + 21)])
            if g_ > lastd + 1 and (g_ - FBG) % 32 != 16 and all(abs(g_ - b) >= sp for b in busy):
                busy.add(g_)
                return g_
            g_ += 1
    if OPT.get('est'):
        print('dma pos', {d: divmod(pp, 16) for (d, j), pp in dpos.items() if j == 0}, 'last', divmod(gLast, 16))
    g13 = 16 * 13
    assert dpos[(27, 3)] < g13 + 2

    for k_, w_ in PFS.items():
        if w_.isdigit() and int(w_) < 15:
            S.add(S.post, 16 * int(w_), pfl(k_))
    S.fill(norm_ops(0, 1), 0, 5)
    for i in range(8, 14):
        S.add(S.rd, 16 * (i - 2) + 6, xf_read(i, 0))
        S.add(S.rd, 16 * (i - 2) + 7, xf_read(i, 1))
    for i in range(1, 14):
        if i < 13:
            S.fill(norm_ops(i, 0), 16 * (i - 1) + 6, 16 * (i - 1) + 13)
            S.fill(norm_ops(i, 1), 16 * (i - 1) + 14, 16 * i + 5)
        else:
            S.fill(norm_ops(i), 16 * (i - 1) + 6, 16 * (i - 1) + 14)

    def pub2():
        kr, kg, kt = vTmp + 1, vTmp, vTmp + 2
        e(f'v_add_u32 {v(kt)}, {L_ST}, {v(vL16)}')
        e(f'ds_read_b32 {v(kr)}, {v(kt)} offset:8')
        e(f's_lshl_b32 {s(sA)}, {s(sQt)}, 6')
        e(f's_sub_u32 {s(sA)}, 0xffff, {s(sA)}')
        e(f'v_sub_u32 {v(kg)}, {s(sA)}, {v(vLane)}')
        E([f'v_cvt_pk_bf16_f32 {v(kr)}, 0, {v(kr)}', f'v_ashrrev_i32 {v(kt)}, 31, {v(kr)}', f'v_or_b32 {v(kt)}, 0x80000000, {v(kt)}',
           f'v_xor_b32 {v(kr)}, {v(kr)}, {v(kt)}', f'v_and_b32 {v(kr)}, 0xffff0000, {v(kr)}', f'v_or_b32 {v(kr)}, {v(kr)}, {v(kg)}'])
        E(top2(kr, kg, kt, sM))
        e(f's_lshl_b32 {s(sA)}, {s(sQt)}, 3')
        e(f'v_lshlrev_b32 {v(kt)}, 20, {v(vLane)}')
        e(f'buffer_store_dwordx2 {v(kg,2)}, {v(kt)}, {s(sDBG,4)}, {s(sA)} offen sc1')
    S.add(S.post, 16 * 2 + BG + 1, side('L_pub2', [f's_cmp_eq_u32 {s(sPub)}, 0'], 2, pub2))

    for tt in range(8):
        src = ACC + 16 * tt
        if tt < 4:
            ops = [f'v_cvt_pk_bf16_f32 {v(QO+8*tt+r)}, {v(src+2*r)}, {v(src+2*r+1)}' for r in range(8)]
            S.fill(ops, g13 + 2 * tt + 3, g13 + 2 * tt + 6)
        else:
            ops = []
            for r in range(9):
                if r < 8:
                    ops.append(f'v_cvt_pk_bf16_f32 {v(src+2*r)}, {v(src+2*r)}, {v(src+2*r+1)}')
                if r:
                    ops.append(f'v_accvgpr_write_b32 {a(QP+8*(tt-4)+r-1)}, {v(src+2*r-2)}')
            S.fill(ops, g13 + max(2 * tt + 3, 13 + 4 * (tt - 4)), g13 + 16 + 4 * (tt - 4))

    zero = [f'v_mov_b64 {v(Z+r,2)}, 0' for r in range(0, 16, 2)] + [f'v_mov_b32 {v(vL)}, 0']
    S.fill(zero, 16 * 14 + 12, 16 * 15 + 1)
    sm = softmax_ops(X0, P0)
    mx = max_ops(X0)
    allo = []
    for n, o in enumerate(sm):
        allo.append(o)
        if n % 4 == 3 and mx:
            allo.append(mx.pop(0))
    allo += mx + [f's_mov_b32 {s(sA)}, {fbits(THR)}', f'v_cmp_lt_f32_e64 vcc, {s(sA)}, |{v(vMx)}|']
    S.fill(allo, 16 * 15 + 2, 16 * 15 + 15)

    def fixcall(t, name):
        br = I(f's_cbranch_vccnz L_st{t}', taken=lambda k, var: var == 1)
        br.clob = [v(vTmp), v(vTmp + 1), v(vMx), s(sRet), s(sRet + 1)] + [v(vT + r) for r in range(4)]
        S.add(S.post, 16 * t + 15, [br, f'L_rt{t}:'])
        tail_code.append(lambda: (p.label(f'L_st{t}'), e(f's_call_b64 {s(sRet,2)}, {name}'), e(f's_branch L_rt{t}')))
    fixcall(15, 'L_fix0')
    W = lambda t: 16 * t + FBG + 1
    m0_, m1_, m2_, m3_ = MT, MT + 1, MT + 2, MT + 3
    XBm, WA, WDv = XB, XB + 16, XB + 32
    ON4 = XB + 40
    wv, wsa, wsb, wdv = MT + 14, sM + 6, sM + 7, MT + 15
    Y = MT + 12
    gPoll = vslot(16 * 16 + 6)
    S.add(S.post, gPoll, f'buffer_load_dword {v(m0_)}, {v(m1_)}, {s(sDBG,4)}, 0 offen sc1')
    tC = opt('tc', 21)
    for k_, w_ in PFS.items():
        if w_.isdigit() and int(w_) >= 15:
            S.add(S.post, vslot(max(W(int(w_)), 256)), pfl(k_))
    if MOE:
        gXL = [vslot(W(tC) + 20) for q in range(5)]
        ML = opt('mdl', 16)
        NP = 64 // ML
        gMD = []
        for q in range(4 * NP):
            blk, pc_ = q // NP, q % NP
            sr, so = (sT1, sT2)[blk >> 1], (wsa, wsb)[blk & 1]
            gMD.append(vslot(W(opt('tmd', 19) + 2 * (q // opt('mdw', 4))), opt('mdsp', 3)))
            ops = [f's_add_u32 m0, {s(sM+5)}, {XA + (blk >> 1) * 8192 + (blk & 1) * 4096 + pc_ * ML * 16}']
            if NP > 1:
                ops += [f's_add_u32 {s(sM+4)}, {s(so)}, {pc_ * ML * 3584}', f's_mov_b64 exec, {hex((1 << ML) - 1)}']
                so = sM + 4
            ops.append(I(f'buffer_load_dwordx4 {v(wv)}, {s(sr,4)}, {s(so)} offen lds', stream='moe'))
            if NP > 1:
                ops.append('s_mov_b64 exec, -1')
            S.add(S.post, gMD[-1], ops)
        gWD = [vslot(W(opt('twd', 27) + 2 * (f >> 2))) for f in range(8)]
        for f in range(8):
            S.add(S.post, gWD[f], f'buffer_load_dword {a(WDv+f)}, {v(wdv)}, {s(sMO,4)}, {s(sM+2 if f < 4 else sM+3)} offen offset:{896*(f%4)}')
        S.add(S.post, gXL[0], f'buffer_load_dwordx2 {v(m2_,2)}, {v(m1_)}, {s(sWS,4)}, {s(sC)} offen sc1')
        for q in range(4):
            S.add(S.post, gXL[1 + q], f'buffer_load_dwordx4 {a(XBm+4*q,4)}, {v(m0_)}, {s(sX,4)}, {s(sA if q < 2 else sB)} offen offset:{3072+64*(q%2)}')
        gY = [vslot(W(opt('ty', 39))) for q in range(4)]
        for q in range(4):
            S.add(S.post, gY[q], I(f'buffer_atomic_add_f32 {v(Y+q)}, {v(m0_)}, {s(sWS,4)}, {s(sA)} offen offset:{896*q} sc1', stream='y'))
    tc0 = opt('tclr', 16)
    NOCLR = opt('noclr', 0)
    for q in range(14):
        S.add(S.post, vslot(16 * tc0 + q * opt('clrsp', 24), 3),
              I(f'buffer_store_dwordx4 {a(NEG,4)}, {v(vL16)}, {s(sWS,4)}, {s(sThr if NOCLR else sPart+q//2)} offen offset:{1024*(q%2)} sc1', stream='clr'))
    u0, u1 = MT + 8, MT + 9
    gCn = vslot(W(TCN)) if TCN < 45 else W(TCN) + 1
    if OPT.get('est') and MOE:
        print('XL', [divmod(x, 16) for x in gXL], 'MD', [divmod(x, 16) for x in gMD], 'WD', [divmod(x, 16) for x in gWD], 'Y', [divmod(x, 16) for x in gY])
    S.add(S.post, gCn, f'buffer_atomic_add {v(u1)}, {v(u0)}, {s(sWS,4)}, {s(sB)} offen sc1')
    for j in range(15):
        t = 16 + 2 * j
        S.at(16 * t, f'v_add_f32 {v(vL)}, {v(vL)}, {v(vLc)}')
        ops = softmax_ops(XS[(j + 1) % 2], PS[(j + 1) % 2]) + [f'v_cmp_lt_f32 vcc, {s(sThr)}, {v(vLc)}']
        if j < 14:
            S.fill(ops, 16 * t + 2, 16 * t + 30)
            fixcall(t + 1, 'L_fixa' if j % 2 == 0 else 'L_fixb')
        else:
            S.fill(ops, 16 * t + 2, 16 * t + 15)
            fixcall(t, 'L_fixl')

    ops = [f'v_lshlrev_b32 {v(m1_)}, 2, {v(vLane)}']
    S.fill(ops, 16 * 16, gPoll - 1)
    ops = [f's_mul_i32 {s(sA)}, {s(sKvh)}, {512*896}'] + srd_off(sQ, pWO, sA, 512 * 896 + 3072)
    gE = S.fill(ops, 16 * 16 + 1, 16 * 16 + 12)
    gC = W(tC)
    S.at(gC, [f'v_cmp_eq_u32_e64 {s(sM,2)}, 0, {v(m0_)}'])
    S.at(gC + 1, [f's_cmp_lg_u64 {s(sM,2)}, 0', I('s_cbranch_scc1 L_spin1', taken=lambda k, var: var == 1), 'L_spin1r:'])

    if 1:
        def spin1():
            p.label('L_spin1')
            e(f's_mov_b32 {s(sA)}, 0')
            p.label('L_spin1l')
            e('s_sleep 2')
            e(f'buffer_load_dword {v(m0_)}, {v(m1_)}, {s(sDBG,4)}, 0 offen sc1')
            e(f's_add_u32 {s(sA)}, {s(sA)}, 1')
            e(f's_cmp_gt_u32 {s(sA)}, 0x10000')
            e('s_cbranch_scc1 L_spin1r', taken=lambda k, var: False)
            e('s_waitcnt vmcnt(0)')
            e(f'v_cmp_eq_u32_e64 {s(sM,2)}, 0, {v(m0_)}')
            e(f's_cmp_lg_u64 {s(sM,2)}, 0')
            e('s_cbranch_scc1 L_spin1l', taken=lambda k, var: k == 0)
            e('s_branch L_spin1r')
        tail_code.append(spin1)
    if MOE:
        ops = [f'v_mul_u32_u24 {v(wv)}, 3584, {v(vLane)}', f's_lshl_b32 {s(sA)}, {s(sD_)}, 4', f'v_add_u32 {v(wv)}, {s(sA)}, {v(wv)}',
               f's_mul_i32 {s(wsa)}, {s(sW)}, {64*3584}', f's_add_u32 {s(wsb)}, {s(sW)}, 4', f's_min_u32 {s(wsb)}, {s(wsb)}, 6',
               f's_mul_i32 {s(wsb)}, {s(wsb)}, {64*3584}', f's_lshl_b32 {s(sM+5)}, {s(sW)}, 10',
               f'v_min_u32 {v(wdv)}, 55, {v(vLane)}', f'v_lshlrev_b32 {v(wdv)}, 2, {v(wdv)}',
               f's_mul_i32 {s(sM+2)}, {s(sD_)}, {8*896}', f's_mul_i32 {s(sM+3)}, {s(sW)}, 224', f's_add_u32 {s(sM+2)}, {s(sM+2)}, {s(sM+3)}',
               f's_add_u32 {s(sM+3)}, {s(sM+2)}, {4*896}']
        S.fill(ops, gE + 1, min(gMD[0], gC) - 1)
        ops = top2(m0_, m1_, m2_, sM)
        ops += [f'v_readfirstlane_b32 {s(sSel0)}, {v(m1_)}', f'v_readfirstlane_b32 {s(sSel1)}, {v(m0_)}',
                f's_mov_b32 {s(sM)}, 0xaaaaaaaa', f's_mov_b32 {s(sM+1)}, 0xaaaaaaaa',
                f'v_cndmask_b32_e64 {v(m0_)}, {v(m1_)}, {v(m0_)}, {s(sM,2)}',
                f'v_not_b32 {v(m0_)}, {v(m0_)}', f'v_and_b32 {v(m0_)}, 2047, {v(m0_)}',
                f'v_lshlrev_b32 {v(m1_)}, 3, {v(m0_)}', f's_mov_b32 {s(sC)}, {WS_STATS}',
                f'v_mul_u32_u24 {v(m0_)}, 896, {v(m0_)}', f'v_lshrrev_b32 {v(m2_)}, 4, {v(vLane)}',
                f'v_lshl_add_u32 {v(m0_)}, {v(m2_)}, 4, {v(m0_)}',
                f's_lshl_b32 {s(sA)}, {s(sW)}, 7', f's_add_u32 {s(sB)}, {s(sW)}, 4', f's_min_u32 {s(sB)}, {s(sB)}, 6',
                f's_lshl_b32 {s(sB)}, {s(sB)}, 7']
        S.fill(ops, gC + 2, gXL[0] - 1, maxper=2)
        ops = [f'v_bfe_u32 {v(m0_)}, {v(vLane)}, 1, 1', f'v_lshlrev_b32 {v(m0_)}, 13, {v(m0_)}',
               f'v_lshrrev_b32 {v(m1_)}, 4, {v(vLane)}', f'v_lshl_add_u32 {v(m0_)}, {v(m1_)}, 7, {v(m0_)}',
               f'v_bfe_u32 {v(m1_)}, {v(vLane)}, 2, 2', f'v_lshl_add_u32 {v(m0_)}, {v(m1_)}, 4, {v(m0_)}',
               f'v_and_b32 {v(m1_)}, 1, {v(vLane)}', f'v_lshl_add_u32 {v(m0_)}, {v(m1_)}, 3, {v(m0_)}',
               f's_lshl_b32 {s(sA)}, {s(sW)}, 10', f's_add_u32 {s(sA)}, {s(sA)}, {XA}', f'v_add_u32 {v(m0_)}, {s(sA)}, {v(m0_)}',
               f'v_mov_b32 {v(m1_)}, 0x3f803f80'] + [f'v_accvgpr_write_b32 {a(ON4+r)}, {v(m1_)}' for r in range(4)]
        gE = S.fill(ops, gXL[4] + 1, gXL[4] + 24)
        gT = 16 * (TMX - 2) - 8
        assert gE < gT
        ops = [waitv('moe', 4 * NP)]
        for q in range(4):
            o = (q >> 1) * 4096 + (q & 1) * 512
            ops += [f'ds_read_b64_tr_b16 {a(WA+4*q,2)}, {v(m0_)} offset:{o}', f'ds_read_b64_tr_b16 {a(WA+4*q+2,2)}, {v(m0_)} offset:{o+64}']
        gE = S.fill(ops, gT, gT + 8)
        DX, DC = MT + 4, MT + 8
        gm = max(gE + 3, W(TMX - 2) - 3)
        gm += gm & 1
        S.add(S.post, gm, f'{MF16} {v(DC,4)}, {a(WA,4)}, {a(ON4,4)}, 0')
        S.add(S.post, gm + 2, f'{MF16} {v(DC,4)}, {a(WA+4,4)}, {a(ON4,4)}, {v(DC,4)}')
        S.add(S.post, gm + 4, f'{MF16} {v(DX,4)}, {a(WA,4)}, {a(XBm,4)}, 0')
        S.add(S.post, gm + 6, I(f'{MF16} {v(DX,4)}, {a(WA+4,4)}, {a(XBm+4,4)}, {v(DX,4)}', also=[a(XBm + 8, 8), a(WA + 8, 8)]))
        S.add(S.post, gm + 8, [f's_cmp_eq_u32 {s(sW)}, 3', I('s_cbranch_scc1 L_w3a', taken=lambda k, var: var == 1),
                               f'{MF16} {v(DC,4)}, {a(WA+8,4)}, {a(ON4,4)}, {v(DC,4)}',
                               f'{MF16} {v(DX,4)}, {a(WA+8,4)}, {a(XBm+8,4)}, {v(DX,4)}', 'L_w3a:'])
        S.add(S.post, gm + 10, [f's_cmp_eq_u32 {s(sW)}, 3', I('s_cbranch_scc1 L_w3b', taken=lambda k, var: var == 1),
                                f'{MF16} {v(DC,4)}, {a(WA+12,4)}, {a(ON4,4)}, {v(DC,4)}',
                                f'{MF16} {v(DX,4)}, {a(WA+12,4)}, {a(XBm+12,4)}, {v(DX,4)}', 'L_w3b:'])
        ops = [f'v_mul_f32 {v(DX+r)}, {v(DX+r)}, {v(m2_)}' for r in range(4)]
        ops += [f'v_fmac_f32 {v(DX+r)}, {v(DC+r)}, {v(m3_)}' for r in range(4)]
        ops += [f's_lshl_b32 {s(sA)}, {s(sW)}, 10', f's_add_u32 {s(sA)}, {s(sA)}, {L_MEX}', f'v_add_u32 {v(m0_)}, {s(sA)}, {v(vL16)}',
                f'ds_write_b128 {v(m0_)}, {v(DX,4)}']
        gE = S.fill(ops, gm + 12, 16 * TMX + FBG - 2)
        ops = [f'v_bfe_u32 {v(m0_)}, {v(vLane)}, 2, 1', f'v_lshlrev_b32 {v(m0_)}, 8, {v(m0_)}',
               f'v_bfe_u32 {v(m1_)}, {v(vLane)}, 3, 1', f'v_lshl_add_u32 {v(m0_)}, {v(m1_)}, 4, {v(m0_)}',
               f'v_and_b32 {v(m1_)}, 3, {v(vLane)}', f'v_lshl_add_u32 {v(m0_)}, {v(m1_)}, 2, {v(m0_)}',
               f'v_add_u32 {v(m0_)}, {L_MEX}, {v(m0_)}']
        R = MT + 4
        ops += [f'ds_read2st64_b32 {v(R+2*w_,2)}, {v(m0_)} offset0:{4*w_} offset1:{4*w_+2}' for w_ in range(4)]
        ops += [f's_lshl_b32 {s(sA)}, {s(sW)}, 6', f's_add_u32 {s(sA)}, {s(sA)}, {L_H}',
                f'v_and_b32 {v(m1_)}, 15, {v(vLane)}', f'v_lshlrev_b32 {v(m1_)}, 2, {v(m1_)}', f'v_add_u32 {v(m1_)}, {s(sA)}, {v(m1_)}',
                f'v_mov_b32 {v(m2_)}, {s(sA)}']
        for b in (R, R + 1):
            ops += [f'v_add_f32 {v(b)}, {v(b)}, {v(b+2)}', f'v_add_f32 {v(b+4)}, {v(b+4)}, {v(b+6)}', f'v_add_f32 {v(b)}, {v(b)}, {v(b+4)}',
                    f'v_mul_f32 {v(b)}, {fbits(1/CSC)}, {v(b)}']
        ops += [f'v_cvt_pk_bf16_f32 {v(R+1)}, {v(R)}, {v(R+1)}', f'v_lshlrev_b32 {v(R)}, 16, {v(R+1)}', f'v_and_b32 {v(R+1)}, 0xffff0000, {v(R+1)}',
                f'v_mul_f32 {v(R+2)}, {fbits(-LOG2E)}, {v(R)}', f'v_exp_f32 {v(R+2)}, {v(R+2)}', f'v_add_f32 {v(R+2)}, 1.0, {v(R+2)}',
                f'v_rcp_f32 {v(R+2)}, {v(R+2)}', f'v_mul_f32 {v(R)}, {v(R)}, {v(R+2)}'] + rbf(R) + [f'v_mul_f32 {v(R)}, {v(R)}, {v(R+1)}'] + rbf(R)
        ops += [f'ds_write_b32 {v(m1_)}, {v(R)}']
        H0, H1 = MT + 4, MT + 8
        for hf in range(2):
            ops += [f'ds_read_b128 {v(H0,4)}, {v(m2_)} offset:{16*hf}', f'ds_read_b128 {v(H1,4)}, {v(m2_)} offset:{32+16*hf}']
            for f in range(4):
                ops += [f'v_accvgpr_read_b32 {v(m1_)}, {a(WDv+4*hf+f)}',
                        f'v_lshlrev_b32 {v(m0_)}, 16, {v(m1_)}', f'v_and_b32 {v(m1_)}, 0xffff0000, {v(m1_)}']
                op = 'v_mul_f32' if (hf == 0 and f == 0) else 'v_fmac_f32'
                ops += [f'{op} {v(Y)}, {v(m0_)}, {v(H0+f)}', f'{op} {v(Y+1)}, {v(m1_)}, {v(H0+f)}',
                        f'{op} {v(Y+2)}, {v(m0_)}, {v(H1+f)}', f'{op} {v(Y+3)}, {v(m1_)}, {v(H1+f)}']
        ops += [f'v_lshlrev_b32 {v(m0_)}, 2, {v(vLane)}', f'v_cmp_lt_u32_e64 {s(sM,2)}, 55, {v(vLane)}', f'v_mov_b32 {v(m1_)}, {OOB}',
                f'v_cndmask_b32_e64 {v(m0_)}, {v(m0_)}, {v(m1_)}, {s(sM,2)}',
                f's_mul_i32 {s(sA)}, {s(sW)}, 224', f's_and_b32 {s(sB)}, {s(sQt)}, 3', f's_lshl_b32 {s(sB)}, {s(sB)}, 12',
                f's_add_u32 {s(sA)}, {s(sA)}, {s(sB)}', f's_add_u32 {s(sA)}, {s(sA)}, {WS_Y}',
                [f's_cmp_eq_u32 {s(sKvh)}, 7', f's_cselect_b32 {s(sA)}, {s(sThr)}, {s(sA)}']]
        gE = S.fill(ops, 16 * TMX + FBG + 1, gY[0] - 1)

    ops = [f'v_lshrrev_b32 {v(t0)}, 2, {v(vLane)}', f'v_mul_u32_u24 {v(t0)}, 896, {v(t0)}', f'v_and_b32 {v(t1)}, 3, {v(vLane)}',
           f'v_lshl_add_u32 {v(t0)}, {v(t1)}, 4, {v(t0)}', f's_mul_i32 {s(sC)}, {s(sW)}, {64*896}', f'v_add_u32 {v(t0)}, {s(sC)}, {v(t0)}']
    ops += [f'v_add_u32 {v(vDA+j)}, {(14336-1024)*j + 3072}, {v(t0)}' for j in range(4)]
    ga, gb = dpos[(57, 3)] + 1, dpos[(60, 0)] - 1
    ga = max(ga, gb - 8)
    if ga // 16 != gb // 16:
        gb = (ga // 16) * 16 + 14
        ga = max(dpos[(57, 3)] + 1, gb - 8)
    S.fill(ops, ga, gb)
    S.fill([f'v_add_u32 {v(vDB+j)}, 64, {v(vDA+j)}' for j in range(4)], 16 * 42, 16 * 43 + 15)

    vRl, vRo, vXw, vXp = vL, vLc, vMx, vT
    ops = [f's_lshl_b32 {s(sA)}, {s(sH)}, 14', f'v_add_u32 {v(vG)}, {s(sA)}, {v(vTr)}', f'v_add_u32 {v(vG+1)}, {s(sA)}, {v(vTr+1)}']
    S.fill(ops, 16 * 43 + 9, 16 * 43 + 15)
    S.at(g45, [f'v_add_f32 {v(vL)}, {v(vL)}, {v(vLc)}', f's_lshl_b32 {s(sA)}, {s(sW)}, 13', f's_add_u32 {s(sA)}, {s(sA)}, {XA}',
               f'v_mov_b32 {v(vLc)}, {v(vL)}'])
    S.at(g45 + 1, [f'v_add_u32 {v(vXw)}, {s(sA)}, {v(vL16)}', f'v_permlane32_swap_b32 {v(vL)}, {v(vLc)}',
                   f'v_xor_b32 {v(vXp)}, 0x4000, {v(vXw)}', f'v_add_f32 {v(vL)}, {v(vL)}, {v(vLc)}'])
    S.at(g45 + 2, [f'v_rcp_f32 {v(vRl)}, {v(vL)}', 's_nop 0', f'ds_write_b32 {v(vXp)}, {v(vRl)} offset:7168'])
    S.add(S.rd, g45 + FBG + 1, f'ds_read_b32 {v(vRo)}, {v(vXw)} offset:7168')
    for c in range(8):
        tl = TORD[c]
        ops = []
        for gq in range(2):
            if tl == 7:
                src = QO + 8
                ops += [f'v_accvgpr_read_b32 {v(src+r)}, {a(O7+8*gq+r)}' for r in range(8)]
            else:
                src = OV + 16 * tl + 8 * gq
            dst = ofrag(2 * c + gq)
            ops += [f'v_cvt_pk_bf16_f32 {v(dst+r)}, {v(src+2*r)}, {v(src+2*r+1)}' for r in range(4)]
            if c < 4:
                ops.append(f'ds_write_b128 {v(vXw)}, {v(dst,4)} offset:{(2*c+gq)*1024}')
        lo = [3, 8, 10, 13, 16, 18, 20, 22][c]
        hi = [8, 10, 13, 15, 19, 21, 23, 25][c]
        S.fill(ops, g45 + lo, g45 + hi)
    for i in range(8):
        S.add(S.rd, gBX + 1 + i // 2, f'ds_read_b128 {a(PF+4*i,4)}, {v(vXp)} offset:{i*1024}')
        S.add(S.post, g46 + BG + 2 + i, f'ds_write_b128 {v(vXw)}, {v(ofrag(8+i),4)} offset:{i*1024}')
        S.add(S.rd, g46 + 16 + BG + i, f'ds_read_b128 {a(PF+32+4*i,4)}, {v(vXp)} offset:{i*1024}')

    EP = MT
    done = {key: 46 + st for st, key in enumerate(GORD)}

    def alt(t1_, t2_):
        i = I(t1_)
        i.alt = t2_
        return i

    def epi_math(n, tail=False):
        A_, B_ = GACC[(n, 0)], GACC[(n, 1)]
        r0, r1 = (vRo, vRl) if (n >= 2 and not tail) else (vRl, vRo)
        return ([alt(f'v_mul_f32 {v(A_+r)}, {v(A_+r)}, {v(vRl)}', f'v_mul_f32 {v(A_+r)}, {v(A_+r)}, {v(r0)}') for r in range(16)],
                [alt(f'v_fmac_f32 {v(A_+r)}, {v(B_+r)}, {v(vRo)}', f'v_fmac_f32 {v(A_+r)}, {v(B_+r)}, {v(r1)}') for r in range(16)])

    def epi_cvt(n):
        A_ = GACC[(n, 0)]
        _, fm = epi_math(n)
        ops = []
        for gq in range(2):
            ops += fm[8 * gq:8 * gq + 8]
            ops += [f'v_cvt_pk_bf16_f32 {v(EP+4*gq+r)}, {v(A_+8*gq+2*r)}, {v(A_+8*gq+2*r+1)}' for r in range(4)]
        return ops

    def epi_st(n):
        if opt('nost', 0):
            return ['s_nop 0', 's_nop 0']
        md = OPT.get('stmod', 'sc1').replace('+', ' ').replace('none', '')
        return [I(f'buffer_store_dwordx4 {v(EP+4*gq,4)}, {v(vL16)}, {s(sWS,4)}, {s(sPart+n)} offen offset:{1024*gq} {md}', stream='part')
                for gq in range(2)]
    gs = opt('gs', 7)
    for n in range(5):
        stv = epi_st(n)
        gq = 16 * (done[(n, 1)] + 1)
        if n == 0:
            S.add(S.post, gq + gs, stv[0])
            S.add(S.post, gq + 14, stv[1])
        elif n == 4:
            S.add(S.post, gq + gs, stv[0])
            S.add(S.post, gq + 12, stv[1])
        else:
            S.add(S.post, gq + gs, stv[0])
            S.add(S.post, gq + 16 + gs, stv[1])
    for n in range(7):
        ta, tb = done[(n, 0)], done[(n, 1)]
        mu, _ = epi_math(n)
        if n < 6:
            cv, stv = epi_cvt(n), epi_st(n)
            gq = 16 * (tb + 1)
            if n == 5:
                S.fill(cv[:12] + stv[:1] + cv[12:] + stv[1:], gq + 2, gq + 9)
            else:
                S.fill(cv[:12], gq + 2, gq + gs - 1)
                S.fill(cv[12:], gq + gs + 1, gq + {0: 13, 4: 11}.get(n, 15))
        S.fill(mu, 16 * (ta + 1) + 2, 16 * (ta + 1) + 15)
    ops = [f'v_lshlrev_b32 {v(u0)}, 28, {v(vLane)}', f'v_lshl_or_b32 {v(u0)}, {v(vLane)}, 24, {v(u0)}',
           f'v_and_b32 {v(u0)}, 0x70000000, {v(u0)}', f'v_bfe_u32 {v(u1)}, {v(vLane)}, 3, 1', f'v_lshl_or_b32 {v(u0)}, {v(u1)}, 28, {v(u0)}',
           f'v_mov_b32 {v(u1)}, 1',
           f's_and_b32 {s(sB)}, {s(sQt)}, 3', f's_lshl_b32 {s(sB)}, {s(sB)}, 12', f's_add_u32 {s(sB)}, {s(sB)}, {WS_Y+3584}',
           [f's_cmp_eq_u32 {s(sW)}, 0', f's_cselect_b32 {s(sB)}, {s(sB)}, {OOB}']]
    S.fill(ops, 16 * (TCN - 2), 16 * TCN - 1)

    GT = MT + 8
    q0, q1, q2, q3 = GT + 2, GT + 3, GT + 4, GT + 5
    ops = [f'v_and_b32 {v(q0)}, 31, {v(vLane)}', f'v_lshrrev_b32 {v(q1)}, 5, {v(vLane)}', f'v_lshlrev_b32 {v(q1)}, 2, {v(q1)}',
           f'v_sub_u32 {v(q0)}, {v(q0)}, {v(q1)}', f'v_mov_b32 {v(q2)}, 0x3f80', f'v_mov_b32 {v(q3)}, 0x3f800000']
    for gq_ in range(2):
        for r in range(4):
            m = 16 * gq_ + 8 * (r // 2) + 2 * (r % 2)
            ops += [f'v_cmp_eq_u32_e64 {s(sM+4,2)}, {m}, {v(q0)}', f'v_cmp_eq_u32_e64 {s(sM+2,2)}, {m+1}, {v(q0)}',
                    f'v_cndmask_b32_e64 {v(q1)}, 0, {v(q2)}, {s(sM+4,2)}', f'v_cndmask_b32_e64 {v(q1)}, {v(q1)}, {v(q3)}, {s(sM+2,2)}',
                    f'v_accvgpr_write_b32 {a(AG+4*gq_+r)}, {v(q1)}']
    selops = ops
    GX = QO + 8
    go = vTmp
    ops = [f'v_and_b32 {v(go)}, 31, {v(vLane)}', f's_lshl_b32 {s(sC)}, {s(sQt)}, 1', f's_add_u32 {s(sC)}, {s(sC)}, {s(sRg)}',
           f's_lshl_b32 {s(sB)}, {s(sC)}, 5', f'v_add_u32 {v(go)}, {s(sB)}, {v(go)}',
           f'v_lshrrev_b32 {v(go+1)}, 5, {v(vLane)}', f'v_lshlrev_b32 {v(go+1)}, 4, {v(go+1)}',
           f'v_mul_u32_u24 {v(go+2)}, 896, {v(go)}', f'v_add_u32 {v(go+2)}, {v(go+2)}, {v(go+1)}',
           f'v_and_b32 {v(GT)}, 3, {v(vLane)}', f'v_lshlrev_b32 {v(GT)}, 12, {v(GT)}',
           [f's_cmp_eq_u32 {s(sKvh)}, 7', f's_cselect_b32 {s(sM+6)}, 1, {s(sW)}'],
           [f's_cmp_eq_u32 {s(sM+6)}, 0', f's_cselect_b32 {s(sM+7)}, {WS_Y+3584}, {s(sThr)}', f's_cselect_b32 {s(sM+6)}, 64, 0']]
    if MOE:
        ops += [f's_not_b32 {s(sA)}, {s(sSel0)}', f's_bfe_u32 {s(sA)}, {s(sA)}, {5 | (6 << 16)}', f's_not_b32 {s(sB)}, {s(sSel1)}',
                f's_bfe_u32 {s(sB)}, {s(sB)}, {5 | (6 << 16)}',
                [f's_cmp_eq_u32 {s(sA)}, {s(sC)}', f's_cselect_b32 {s(sD_)}, 1, 0'],
                [f's_cmp_eq_u32 {s(sB)}, {s(sC)}', f's_cselect_b32 {s(sD_)}, 1, {s(sD_)}'],
                [f's_cmp_eq_u32 {s(sKvh)}, 7', f's_cselect_b32 {s(sD_)}, 0, {s(sD_)}']]
    gPl = 16 * opt('tpoll', 51) + 7
    gCk = 16 * opt('tchk', 55) + BG
    S.add(S.post, gPl, f'buffer_load_dword {v(GT+1)}, {v(GT)}, {s(sWS,4)}, {s(sM+7)} offen sc1')
    S.fill(ops, max(gCn + 1, 16 * 47 + 8), gPl - 1)
    S.at(gCk - 2, [f'v_cmp_ne_u32_e64 {s(sM,2)}, {s(sM+6)}, {v(GT+1)}'])
    S.at(gCk - 1, [f's_cmp_lg_u64 {s(sM,2)}, 0', I('s_cbranch_scc1 L_spin2', taken=lambda k, var: var == 1), 'L_spin2r:'])

    def spin2(sf):
        p.label('L_spin2' + sf)
        e(f's_mov_b32 {s(sA)}, 0')
        p.label('L_spin2l' + sf)
        e('s_sleep 2')
        e(f'buffer_load_dword {v(GT+1)}, {v(GT)}, {s(sWS,4)}, {s(sM+7)} offen sc1')
        e(f's_add_u32 {s(sA)}, {s(sA)}, 1')
        e(f's_cmp_gt_u32 {s(sA)}, 0x10000')
        e('s_cbranch_scc1 L_spin2r' + sf, taken=lambda k, var: False)
        e('s_waitcnt vmcnt(0)')
        e(f'v_cmp_ne_u32_e64 {s(sM,2)}, {s(sM+6)}, {v(GT+1)}')
        e(f's_cmp_lg_u64 {s(sM,2)}, 0')
        e('s_cbranch_scc1 L_spin2l' + sf, taken=lambda k, var: k == 0)
        e('s_branch L_spin2r' + sf)
    tail_code.append(lambda: spin2(''))
    tail_code.append(lambda: spin2('b'))

    def PT(q):
        return OV + 16 * (q // 2) + 8 + 4 * (q % 2)

    def pload(q):
        return [f's_add_u32 {s(sA)}, {s(sIn)}, {(q // 4) * 4096}',
                f'buffer_load_dwordx4 {v(PT(q),4)}, {v(vL16)}, {s(sWS,4)}, {s(sA)} offen offset:{1024*(q%4)} sc1']
    GR = [int(x) for x in OPT.get('gr', '0.6.10.14').split('.')]
    EPOS = [int(x) for x in OPT.get('epos', '10.13.16.19.24.27.42.45.58.61').split('.')]
    NE = len(EPOS)
    yv, sg = GT + 6, GT + 7
    if MOE:
        def ysel1():
            E([f's_not_b32 {s(sA)}, {s(sSel0)}', f's_and_b32 {s(sA)}, {s(sA)}, 2047', f'v_cmp_eq_u32_e64 {s(sM,2)}, {s(sA)}, {v(go)}',
               f's_not_b32 {s(sA)}, {s(sSel1)}', f's_and_b32 {s(sA)}, {s(sA)}, 2047', f'v_cmp_eq_u32_e64 {s(sM+6,2)}, {s(sA)}, {v(go)}',
               f'v_mov_b32 {v(yv)}, {OOB}', f'v_add_u32 {v(sg)}, 1792, {v(go+1)}',
               f'v_cndmask_b32_e64 {v(yv)}, {v(yv)}, {v(go+1)}, {s(sM,2)}',
               f'v_cndmask_b32_e64 {v(yv)}, {v(yv)}, {v(sg)}, {s(sM+6,2)}'])
            for rep in range(4):
                e(f's_add_u32 {s(sA)}, {s(sCol)}, {WS_Y + rep * 4096}')
                for gq_ in range(2):
                    for par in range(2):
                        e(f'buffer_load_dwordx4 {a(YR+16*rep+8*gq_+4*par,4)}, {v(yv)}, {s(sWS,4)}, {s(sA)} offen offset:{32*gq_+896*par} sc1')
            E([f'v_mov_b32 {v(sg)}, {s(sSel1)}', f'v_mov_b32 {v(GT)}, {s(sSel0)}',
               f'v_cndmask_b32_e64 {v(sg)}, {v(sg)}, {v(GT)}, {s(sM,2)}',
               f'v_ashrrev_i32 {v(GT)}, 31, {v(sg)}', f'v_not_b32 {v(GT)}, {v(GT)}', f'v_or_b32 {v(GT)}, 0x80000000, {v(GT)}',
               f'v_xor_b32 {v(sg)}, {v(sg)}, {v(GT)}', f'v_and_b32 {v(sg)}, 0xffff0000, {v(sg)}',
               f'v_mul_f32 {v(sg)}, {fbits(-LOG2E)}, {v(sg)}', f'v_exp_f32 {v(sg)}, {v(sg)}', f'v_add_f32 {v(sg)}, 1.0, {v(sg)}',
               f'v_rcp_f32 {v(sg)}, {v(sg)}'] + rbf(sg))
        S.add(S.post, gLast + 3, side('L_ys1', [f's_cmp_eq_u32 {s(sD_)}, 1'], 1, ysel1,
                                         clob=[s(sA), s(sM), s(sM + 1), s(sM + 6), s(sM + 7), v(GT), v(yv), v(sg)], dup=True))
    for q in range(NE):
        assert 16 * 56 + EPOS[q] > max(gCk, gLast)
        S.add(S.post, 16 * 56 + EPOS[q], pload(q))
    S.add(S.post, 16 * 57 + 14, f'buffer_load_dwordx4 {v(GX,4)}, {v(go+2)}, {s(sX,4)}, {s(sCol)} offen offset:3072')
    S.add(S.post, 16 * 58, f'buffer_load_dwordx4 {v(GX+4,4)}, {v(go+2)}, {s(sX,4)}, {s(sCol)} offen offset:{3072+32}')
    S.fill(selops, 16 * 57, 16 * 59 + 15, maxper=2)

    if PROF:
        pl = opt('plvl', 1)
        for t in {1: (14, 16, 30, 44, 46, 53), 2: (4, 14)}.get(pl, ()):
            S.add(S.pre, 16 * t, stamp_ops())
        if pl >= 3:
            t0_ = opt('pt0', 0)
            for t in range(t0_, t0_ + 9):
                so_ = stamp_ops()
                S.add(S.post, 16 * t + 5, so_[0])
                S.add(S.post, 16 * t + 6, so_[1])
    labels = {0: 'L_g1', 14: 'L_s0', 16: 'L_fl', 44: 'L_pv14', 46: 'L_g4'}
    S.add(S.post, 16 * 50 - 1, [f's_cmp_eq_u32 {s(sH)}, 1', I('s_cbranch_scc1 L_g4b', taken=lambda k, var: var >= 3)])
    for t in range(NS):
        if t in labels:
            p.label(labels[t])
        if t == 50:
            n50 = len(p.ins)
        S.emit(p, 16 * t, 16 * t + 16)
    copyA = p.ins[n50:]

    def copy_b():
        p.label('L_g4b')
        for i in copyA:
            t_ = getattr(i, 'alt', i.text)
            tk = None
            if i.kind == 'label':
                t_ = i.op + 'b:'
            elif i.kind == 'br':
                t_ += 'b'
                tk = lambda k, var: var == 4
            j = I(t_, taken=tk, stream=i.stream, waitv=i.waitv)
            if i.kind not in ('label', 'dir'):
                j.also = i.also
            e(j)
        e(f'v_mov_b32 {v(vRo)}, {v(vRl)}')
        e('s_branch L_tail')
    if OPT.get('est'):
        for t in range(NS):
            print(t, S.c[16 * t:16 * t + 16], sum(max(0, c - 24) for c in S.c[16 * t:16 * t + 16]))

    p.label('L_tail')
    E(stamp_ops(1))
    e(f's_cmp_eq_u32 {s(sKvh)}, 7')
    e('s_cbranch_scc1 L_tail7', taken=lambda k, var: var == 2)
    A_ = GACC[(6, 0)]
    for q in range(NE, 14):
        E(pload(q) if q % 4 == 0 or q == NE else pload(q)[1:])
    XF, BF = X1, P0
    c1, c2 = GT + 2, GT + 3
    e(f'v_mul_f32 {v(c1)}, {fbits(1/CSC)}, {v(vA)}')
    e(f'v_mul_f32 {v(c2)}, {fbits(1/CSC)}, {v(vB)}')
    for r in range(8):
        E([f'v_lshlrev_b32 {v(XF+2*r)}, 16, {v(GX+r)}', f'v_and_b32 {v(XF+2*r+1)}, 0xffff0000, {v(GX+r)}',
           f'v_fma_f32 {v(BF+2*r)}, {v(XF+2*r)}, {v(c1)}, {v(c2)}', f'v_fma_f32 {v(BF+2*r+1)}, {v(XF+2*r+1)}, {v(c1)}, {v(c2)}'])
    E(epi_math(6, True)[1])
    if MOE:
        def ysel2():
            for i in range(16):
                gq_, par, rr = i >> 3, (i >> 2) & 1, i & 3
                w = [GT + 2, GT + 3, GT + 4, GT + 5]
                for rep in range(4):
                    e(f'v_accvgpr_read_b32 {v(w[rep])}, {a(YR+16*rep+i)}')
                e(f'v_add_f32 {v(w[0])}, {v(w[0])}, {v(w[1])}')
                e(f'v_add_f32 {v(w[2])}, {v(w[2])}, {v(w[3])}')
                e(f'v_add_f32 {v(w[0])}, {v(w[0])}, {v(w[2])}')
                e(f'v_fmac_f32 {v(BF+8*gq_+2*rr+par)}, {v(w[0])}, {v(sg)}')
        E(side('L_ys2', [f's_cmp_eq_u32 {s(sD_)}, 1'], 1, ysel2))

    def chk(q0_, q1_):
        rs = [PT(q) for q in range(q0_, q1_)]
        ops = [f'v_max_u32 {v(GT)}, {v(rs[0])}, {v(rs[1])}']
        for i in range(2, len(rs), 2):
            ops.append(f'v_max3_u32 {v(GT)}, {v(GT)}, {v(rs[i])}, {v(rs[i+1])}')
        return ops + [f'v_cmp_eq_u32 vcc, -1, {v(GT)}']

    def respin(name, q0_, q1_):
        def body():
            p.label(name)
            e(f's_mov_b32 {s(sB)}, 0')
            p.label(name + 'l')
            for q in range(q0_, q1_):
                E(pload(q) if q % 4 == 0 or q == q0_ else pload(q)[1:])
            e(f's_add_u32 {s(sB)}, {s(sB)}, 1')
            e(f's_cmp_gt_u32 {s(sB)}, 0x8000')
            e(f's_cbranch_scc1 {name}r', taken=lambda k, var: False)
            E(chk(q0_, q1_))
            e(f's_cbranch_vccnz {name}l', taken=lambda k, var: k == 0)
            e(f's_branch {name}r')
        tail_code.insert(0, body)
        e(f's_cbranch_vccnz {name}', taken=lambda k, var: var == 1)
        p.label(name + 'r')
    E(srd(sT1, pOUT, 2048 * 896))
    gate = []
    TM = QO + 16
    for r in range(16):
        t_ = TM + r % 8
        gate.append([f'v_mul_f32 {v(t_)}, {fbits(-LOG2E)}, {v(BF+r)}', f'v_exp_f32 {v(t_)}, {v(t_)}', f'v_add_f32 {v(t_)}, 1.0, {v(t_)}',
                     f'v_rcp_f32 {v(t_)}, {v(t_)}', f'v_mul_f32 {v(BF+r)}, {v(BF+r)}, {v(t_)}'])
    gl = []
    for b in range(0, 16, 4):
        for k_ in range(5):
            gl += [gate[b + i][k_] for i in range(4)]
    per = (len(gl) + GR[1] - 1) // GR[1]
    for gi in range(len(GR) - 1):
        if gi == len(GR) - 2:
            E(stamp_ops(1))
        E(chk(GR[gi], GR[gi + 1]))
        respin(f'L_re{gi}', GR[gi], GR[gi + 1])
        if gi == len(GR) - 2:
            E(stamp_ops(1))
        for q in range(GR[gi], GR[gi + 1]):
            e(f'{MF} {v(A_,16)}, {a(AG+4*(q%2),4)}, {v(PT(q),4)}, {v(A_,16)}')
            E(gl[q * per:(q + 1) * per])
    for r in range(8):
        E([f'v_fma_f32 {v(XF+2*r)}, {v(A_+2*r)}, {v(BF+2*r)}, {v(XF+2*r)}', f'v_fma_f32 {v(XF+2*r+1)}, {v(A_+2*r+1)}, {v(BF+2*r+1)}, {v(XF+2*r+1)}',
           f'v_cvt_pk_bf16_f32 {v(EP+r)}, {v(XF+2*r)}, {v(XF+2*r+1)}'])
        if r % 4 == 3:
            e(f'buffer_store_dwordx4 {v(EP+r-3,4)}, {v(go+2)}, {s(sT1,4)}, {s(sCol)} offen offset:{32*(r//4)} {OMOD}')
    p.label('L_fin')
    if opt('dbgt', 0):
        e('s_waitcnt vmcnt(0)')
        e(f's_memrealtime {s(sSt,2)}')
        e(f's_and_b32 {s(sA)}, s2, 31')
        e(f's_or_b32 {s(sA)}, {s(sA)}, {s(sW)}')
        e(f's_lshr_b32 {s(sB)}, s2, 5')
        e(f's_lshl_b32 {s(sB)}, {s(sB)}, 3')
        e(f's_cmp_eq_u32 {s(sA)}, 0')
        e(f's_cselect_b32 {s(sB)}, {s(sB)}, 4096')
        e(f's_and_b32 s30, s30, 0xffffff')
        e(f's_and_b32 {s(sSt)}, {s(sSt)}, 0xffffff')
        e(f'v_mov_b32 v0, s30')
        e(f'v_mov_b32 v1, {s(sSt)}')
        e(f'v_lshlrev_b32 v2, 20, {v(vLane)}')
        e(f'buffer_store_dwordx2 v[0:1], v2, {s(sDBG,4)}, {s(sB)} offen sc1')
    if PROF:
        e('s_waitcnt vmcnt(0)')
        E(stamp_ops())
        E(stamp_ops())
        e(f's_memrealtime {s(sSt,2)}')
        e(f'v_writelane_b32 {v(vStamp)}, s30, 14')
        e(f'v_writelane_b32 {v(vStamp)}, {s(sSt)}, 15')
        e(f's_lshl_b32 {s(sA)}, s2, 2')
        e(f's_add_u32 {s(sA)}, {s(sA)}, {s(sW)}')
        e(f's_lshl_b32 {s(sA)}, {s(sA)}, 6')
        e(f's_add_u32 {s(sA)}, {s(sA)}, {WS_PROF}')
        e(f'v_lshlrev_b32 v0, 2, {v(vLane)}')
        e('s_mov_b64 exec, 0xffff')
        e(f'buffer_store_dword {v(vStamp)}, v0, {s(sWS,4)}, {s(sA)} offen')
    p.label('L_end')
    e('s_endpgm')
    copy_b()
    p.label('L_tail7')
    cv, stv = epi_cvt(6), epi_st(6)
    E(cv[:12] + stv[:1] + cv[12:] + stv[1:])
    e('s_branch L_fin')
    for f in tail_code:
        f()
    p.label('L_codeend')
    fix_code(p, 'L_fix0', X0, X1, P0, first=True)
    fix_code(p, 'L_fixa', X1, X0, P1)
    fix_code(p, 'L_fixb', X0, X1, P0)
    fix_code(p, 'L_fixl', X1, None, P1)
    return p


def check_streams(p):
    last = {}
    own = {}
    flows = {}
    for n, i in enumerate(p.ins):
        if i.kind == 'label' and i.op == 'L_end':
            break
        if i.kind in ('label', 'dir'):
            continue
        sid = getattr(i, 'sid', 'mf' if i.kind == 'mfma' else 'lin')
        src = list(i.src)
        dst = list(i.dst)
        if i.op.startswith(('s_cselect', 's_addc', 's_subb', 's_cbranch_scc')):
            src.append('scc')
        if i.kind == 'salu' and not i.op.startswith(('s_mov', 's_cselect', 's_mul', 's_getpc')):
            dst.append('scc')
        dst += getattr(i, 'clob', [])
        for r in src:
            if r in last and last[r] != sid:
                if (sid, r) in own and sid not in ('mf', 'lin'):
                    print('CONFLICT', r, 'writer', last[r], 'reader', sid, '|', i.text)
                flows.setdefault((str(last[r][0] if isinstance(last[r], tuple) else last[r]),
                                  str(sid[0] if isinstance(sid, tuple) else sid)), set()).add(r)
        for r in dst:
            last[r] = sid
            own[(sid, r)] = n
    if OPT.get('flows'):
        for k in sorted(flows):
            rs = sorted(flows[k], key=lambda r: (r[0], int(r[1:]) if r[1:].isdigit() else 0))
            print(k, ' '.join(rs[:24]), '...' if len(rs) > 24 else '')


def kd(name, nv, acc, ns=102):
    return f'''.p2align 6
.amdhsa_kernel {name}
  .amdhsa_next_free_vgpr {nv}
  .amdhsa_next_free_sgpr {ns}
  .amdhsa_accum_offset {acc}
  .amdhsa_group_segment_fixed_size 0
  .amdhsa_kernarg_size 104
  .amdhsa_user_sgpr_count 2
  .amdhsa_user_sgpr_kernarg_segment_ptr 1
  .amdhsa_system_sgpr_workgroup_id_x 1
.end_amdhsa_kernel
'''


def main():
    p = gen_main()
    check_streams(p)
    out = ['; fused sliding-window attention + mixture-of-depths block (generated by work/gen4.py)',
           '; @launch kernel=main_kernel grid=(256,1,1) block=(256,1,1) lds=163840',
           '.amdgcn_target "amdgcn-amd-amdhsa--gfx950"', '.text',
           '.globl main_kernel\n.p2align 8\n.type main_kernel,@function']
    out.append(p.finalize((0, 1, 2, 3, 4)))
    if OPT.get('est'):
        p.estimate()
    out.append('.section .rodata,"a"')
    out.append(kd('main_kernel', 256 + NAGPR, 256))
    open(sys.argv[1], 'w').write('\n'.join(out))


if __name__ == '__main__':
    main()
```
